```python
import torch

def _softmax(x, axis=-1):
    return torch.softmax(x, dim=axis)

def _gelu(x):
    return torch.nn.functional.gelu(x, approximate='tanh')

def _silu(x):
    return torch.nn.functional.silu(x)

def _sigmoid(x):
    return torch.sigmoid(x)

def _layernorm(x, axis=-1, eps=1e-05):
    m = x.mean(dim=axis, keepdim=True)
    v = x.var(dim=axis, keepdim=True, unbiased=False)
    return (x - m) / torch.sqrt(v + eps)

def _scatter_add(tgt, idx, src, axis=0):
    return tgt.clone().index_add_(axis, idx, src)

def _segment_sum(src, seg, n):
    out = torch.zeros((n,) + src.shape[1:], dtype=src.dtype)
    return out.index_add_(0, seg, src)

def _pad(x, pw):
    flat = tuple((v for pair in reversed(pw) for v in pair))
    return torch.nn.functional.pad(x, flat)
kernel_name = 'gated_mix__linear_kernel_hedgehog__memory_aug_recurrent_mem_tr__prompt'

def setup_inputs():

    _w = lambda a: (lambda t: t.to(torch.bfloat16) if t.is_floating_point() else t)(torch.as_tensor(a))

    def _A_setup():
        B, S, D, H = (1, 2048, 640, 32)
        Dh = D // H
        return {'x': _w((lambda *s: torch.randn(*s, dtype=torch.bfloat16) * 0.05)(B, S, D)), 'wqkv': _w((lambda *s: torch.randn(*s, dtype=torch.bfloat16) * 1.6)(D, 3 * D)), 'w_phi': _w((lambda *s: torch.randn(*s, dtype=torch.bfloat16) * 1.6)(H, Dh, Dh) * Dh ** (-0.5)), 'wo': _w((lambda *s: torch.randn(*s, dtype=torch.bfloat16) * 0.05)(D, D))}
    _A_in = _A_setup()

    def _B_setup():
        B, S, Dm = (1, 2048, 640)
        H, Dh = (32, 128)
        M, seg = (8, 32)
        seg = min(seg, S)
        S = S // seg * seg
        return {'x': _w((lambda *s: torch.randn(*s, dtype=torch.bfloat16) * 0.05)(B, S, Dm)), 'mem0': _w((lambda *s: torch.randn(*s, dtype=torch.bfloat16) * 0.8)(B, M, Dm)), 'Wq': _w((lambda *s: torch.randn(*s, dtype=torch.bfloat16) * 3.2)(Dm, H, Dh) * Dm ** (-0.5)), 'Wk': _w((lambda *s: torch.randn(*s, dtype=torch.bfloat16) * 3.2)(Dm, H, Dh) * Dm ** (-0.5)), 'Wv': _w((lambda *s: torch.randn(*s, dtype=torch.bfloat16) * 0.8)(Dm, H, Dh) * Dm ** (-0.5)), 'Wo': _w((lambda *s: torch.randn(*s, dtype=torch.bfloat16) * 0.8)(H, Dh, Dm) * (H * Dh) ** (-0.5)), 'seg_len': seg}
    _B_in = _B_setup()
    return {'A_x': _A_in['x'], 'A_wqkv': _A_in['wqkv'], 'A_w_phi': _A_in['w_phi'], 'A_wo': _A_in['wo'], 'B_x': _B_in['x'], 'B_mem0': _B_in['mem0'], 'B_Wq': _B_in['Wq'], 'B_Wk': _B_in['Wk'], 'B_Wv': _B_in['Wv'], 'B_Wo': _B_in['Wo'], 'B_seg_len': _B_in['seg_len'], 'gate_w': _w((lambda *s: torch.randn(*s, dtype=torch.bfloat16) * 0.05)(640) * 16.0)}

def reference(A_x, A_wqkv, A_w_phi, A_wo, B_x, B_mem0, B_Wq, B_Wk, B_Wv, B_Wo, B_seg_len, gate_w):

    def _A_ref(x, wqkv, w_phi, wo):
        B, S, D = x.shape
        H = 32
        Dh = D // H
        qkv = (lambda x, *d: x.permute(*d))((x @ wqkv).reshape(B, S, 3, H, Dh), 2, 0, 3, 1, 4)
        q, k, v = (qkv[0], qkv[1], qkv[2])
        pq = torch.einsum('bhsd,hdf->bhsf', q, w_phi)
        pk = torch.einsum('bhsd,hdf->bhsf', k, w_phi)
        phi_q = torch.concatenate([_softmax(pq, axis=-1), _softmax(-pq, axis=-1)], axis=-1)
        phi_k = torch.concatenate([_softmax(pk, axis=-1), _softmax(-pk, axis=-1)], axis=-1)
        kv = torch.einsum('bhsf,bhsd->bhfd', phi_k, v)
        z = torch.einsum('bhsf->bhf', phi_k)
        num = torch.einsum('bhqf,bhfd->bhqd', phi_q, kv)
        den = torch.einsum('bhqf,bhf->bhq', phi_q, z)[..., None] + 1e-06
        o = num / den
        return (lambda x, *d: x.permute(*d))(o, 0, 2, 1, 3).reshape(B, S, D) @ wo

    def _B_ref(x, mem0, Wq, Wk, Wv, Wo, seg_len):
        B, S, Dm = x.shape
        H, Dh = (Wq.shape[1], Wq.shape[2])
        M = mem0.shape[1]
        scale = Dh ** (-0.5)
        n_seg = S // seg_len
        L = M + seg_len
        idx = torch.arange(L)
        mask = (idx[:, None] < M) | (idx[:, None] >= idx[None, :])
        mem = mem0
        outs = []
        for s in range(n_seg):
            xs = x[:, s * seg_len:(s + 1) * seg_len, :].clone()
            h = torch.concatenate([mem, xs], axis=1)
            q = torch.einsum('btd,dhe->bhte', h, Wq)
            k = torch.einsum('btd,dhe->bhte', h, Wk)
            v = torch.einsum('btd,dhe->bhte', h, Wv)
            scores = torch.einsum('bhqe,bhke->bhqk', q, k) * scale
            scores = torch.where(mask[None, None], scores, -1000000000.0)
            p = _softmax(scores, axis=-1)
            o = torch.einsum('bhqk,bhke->bhqe', p, v)
            o = torch.einsum('bhte,hed->btd', o, Wo)
            mem = o[:, :M, :].clone()
            outs.append(o[:, M:, :])
        return torch.concatenate(outs, axis=1)
    x = A_x
    g = _sigmoid((x * gate_w).sum(-1, keepdims=True))
    a = _A_ref(x, A_wqkv, A_w_phi, A_wo)
    b = _B_ref(x, B_mem0, B_Wq, B_Wk, B_Wv, B_Wo, B_seg_len)
    return g * a + (1 - g) * b
```

```python
class Asm:
    def __init__(self):
        self.lines = []
        self.lbl = 0
    def __call__(self, s):
        for l in s.split('\n'):
            l = l.strip()
            if l:
                self.lines.append(l)
    def raw(self, s):
        self.lines.append(s)
    def label(self, name):
        self.lines.append(name + ':')
    def newlabel(self, base='L'):
        self.lbl += 1
        return f'{base}_{self.lbl}'
    def text(self):
        out = []
        for l in self.lines:
            if l.endswith(':') or l.startswith('.') or l.startswith(';'):
                out.append(l)
            else:
                out.append('  ' + l)
        return '\n'.join(out) + '\n'

def v(a, n=1):
    return f'v{a}' if n == 1 else f'v[{a}:{a+n-1}]'
def a(x, n=1):
    return f'a{x}' if n == 1 else f'a[{x}:{x+n-1}]'
def s(x, n=1):
    return f's{x}' if n == 1 else f's[{x}:{x+n-1}]'

def kernel_header(name):
    return f""".globl {name}
.p2align 8
.type {name},@function
{name}:
"""
def kernel_desc(name, vgpr=512, sgpr=102, accum=256):
    return f""".section .rodata,"a"
.p2align 6
.amdhsa_kernel {name}
  .amdhsa_next_free_vgpr {vgpr}
  .amdhsa_next_free_sgpr {sgpr}
  .amdhsa_accum_offset {accum}
  .amdhsa_group_segment_fixed_size 0
  .amdhsa_kernarg_size 120
  .amdhsa_user_sgpr_count 2
  .amdhsa_user_sgpr_kernarg_segment_ptr 1
  .amdhsa_system_sgpr_workgroup_id_x 1
  .amdhsa_float_denorm_mode_32 3
.end_amdhsa_kernel
.text
"""

class Sched(Asm):
    def __init__(self):
        super().__init__()
        self.lq=[]
        self.vq=[]
    def lds(self, ins, tag=None):
        self(ins); self.lq.append(tag)
    def wl(self, tag):
        idx=[i for i,t in enumerate(self.lq) if t==tag]
        if not idx: return
        n=len(self.lq)-1-max(idx)
        assert n<=15, n
        self(f's_waitcnt lgkmcnt({n})')
        self.lq=self.lq[max(idx)+1:]
    def wl0(self):
        self('s_waitcnt lgkmcnt(0)'); self.lq=[]
    def vm(self, ins, tag=None):
        self(ins); self.vq.append(tag)
    def wv(self, tag):
        idx=[i for i,t in enumerate(self.vq) if t==tag]
        if not idx: return
        n=len(self.vq)-1-max(idx)
        self(f's_waitcnt vmcnt({n})')
        self.vq=self.vq[max(idx)+1:]
    def wv0(self):
        self('s_waitcnt vmcnt(0)'); self.vq=[]
```

```python
from asmlib import *
from layout import *

L_MEMA=0; L_KX=10240; L_QX=18432; L_KM=20736; L_OX=18432; L_W=24576
QP=288
WVW=17*2048

S_WS=8; S_DBG=12; S_TMP=16
sX=20; sP=21; sW=22; sStep=23
sRole=24; sPartW=25; sPartR=26; sPubL=27; sPubR=28; sRstR=29; sMemB=30; sSlot=31; sPar=32
sQ4=33; sKX=34; sVX=35; sKMo=36; sVMo=37; sC=38; sMemCur=39
sT0=40; sT1=41; sT2=42; sT3=43; sT4=44; sT5=45; sT6=46; sT7=47
sE0=48
sFail=50; sCnt=51; sGlob=52; sPfK=53
sEta=2; sLo=6; sC2=60; sQm=4; sWoff=19
vL=0; vL16=1; vIdx=2; vPst4=3; vPst1=4; vPub=5; vQw=6; vQr=7; vSel=8
vKr=12; vOw=13; vWL=14; vT=15; vT2=16; vKV=17; vT3=86; vT4=87
aQ=18; aK=26; aV=34
RA=42; RW=62; QF=62; RVX=78; vU=86; vU2=87

def home(m,t,b):
    if m=='q': return ('a',(t*10+b)*8)
    if m=='k':
        if b>=5: return ('a',160+((b-5)*2+t)*8)
        i=2*b+t
        if i<2: return ('a',240+i*8)
        if i==2: return ('v',88)
        if i==3: return ('lds',32768)
        return ('lds',20480+(i-4)*2048)
    if m=='v':
        if b>=5: return ('v',96+((b-5)*2+t)*8)
        return ('lds',(2*b+t)*2048)
def WO(lt,k2): return ('v',176+(lt*2+k2)*8)
ACC={'q':aQ,'k':aK,'v':aV}
def R(kind,base,n=8): return f'{kind}[{base}:{base+n-1}]'
def smf(A,acc,Areg,W):
    A(f'v_smfmac_f32_16x16x64_bf16 v[{acc}:{acc+3}], v[{Areg}:{Areg+3}], {R(*W)}, v{vIdx}')

def check_sent(A, regs, t0, t1):
    regs=list(regs)
    A(f'v_max3_u32 v{t0}, v{regs[0]}, v{regs[1]}, v{regs[2]}'); regs=regs[3:]
    two=False
    if len(regs)>=3:
        A(f'v_max3_u32 v{t1}, v{regs[0]}, v{regs[1]}, v{regs[2]}'); regs=regs[3:]; two=True
    k=0
    while len(regs)>=2:
        t=t0 if (k%2==0 or not two) else t1
        A(f'v_max3_u32 v{t}, v{t}, v{regs[0]}, v{regs[1]}'); regs=regs[2:]; k+=1
    if regs: A(f'v_max_u32 v{t0}, v{t0}, v{regs[0]}')
    if two: A(f'v_max_u32 v{t0}, v{t0}, v{t1}')
    A(f'v_cmp_eq_u32 vcc, -1, v{t0}')

def srd(A, base, lo, hi, nbytes):
    A(f's_mov_b32 s{base}, s{lo}')
    A(f's_and_b32 s{base+1}, s{hi}, 0xffff')
    A(f's_mov_b32 s{base+2}, {nbytes}')
    A(f's_mov_b32 s{base+3}, 0x20000')

class Cfg:
    stamps=False; stamp_step=40; cyc=False; only=None; nocomm=False; dbg=None; dmaflags='sc1'; puborder=0; nokx=False; norst=False; nopf=False; kxwait=False; blk=False; kvflag=''; norem=False; norstR=False; nopartrst=False; nopf2=False; dmawait=False; novx=False; cut=None; remat=[('q',0,0)]; dW3=100
    dP=48
    dL=0
CFG=Cfg()
def stamp(A,tag):
    if CFG.cut==tag:
        A.wl0(); A('s_branch L_cut')
    if not CFG.stamps: return
    if CFG.only is not None and tag not in CFG.only: return
    A.wl0()
    A(f'''
    {'s_memtime' if CFG.cyc else 's_memrealtime'} s[68:69]
    s_waitcnt lgkmcnt(0)
    s_and_b32 s68, s68, 0xffffff
    s_or_b32 s68, s68, {tag<<24}
    s_cmp_lg_u32 s{sStep}, {CFG.stamp_step}
    s_cbranch_scc1 1f
    s_mov_b32 m0, s70
    s_nop 0
    s_movreld_b32 s72, s68
    s_add_u32 s70, s70, 1
    s_min_u32 s70, s70, 29
    1:
    ''')
def dump(A,tag,regs):
    if CFG.dbg!=tag: return
    l=A.newlabel('L_dbg')
    A.wl0()
    A(f'''s_nop 15
    s_cmp_lg_u32 s{sStep}, 0
    s_cbranch_scc1 {l}
    s_lshl_b32 s68, s{sX}, 5
    s_add_u32 s68, s68, s{sP}
    s_lshl_b32 s68, s68, 2
    s_add_u32 s68, s68, s{sW}
    s_lshl_b32 s68, s68, 13
    s_add_u32 s68, s68, {DBGM_OFF}
    v_lshlrev_b32 v87, 2, v{vL}''')
    for k,r in enumerate(regs):
        A(f'buffer_store_dword v{r}, v87, s[{S_WS}:{S_WS+3}], s68 offen offset:{k*256}')
    A('s_waitcnt vmcnt(0)')
    A(f'{l}:')
def nops(A,n):
    while n>0:
        k=min(n,16); A(f's_nop {k-1}'); n-=k

def gen_startup(A):
    A(f'''
    s_cmp_ge_u32 s2, 256
    s_cbranch_scc1 L_end
    s_load_dwordx2 s[4:5], s[0:1], 112
    s_load_dwordx2 s[6:7], s[0:1], 104
    s_load_dwordx4 s[56:59], s[0:1], 40
    s_load_dwordx4 s[60:63], s[0:1], 56
    s_load_dwordx2 s[64:65], s[0:1], 72      ; Wo
    s_getreg_b32 s{sX}, hwreg(HW_REG_XCC_ID, 0, 4)
    v_lshrrev_b32 v1, 6, v0
    v_and_b32 v{vL}, 63, v0
    s_nop 1
    v_readfirstlane_b32 s{sW}, v1
    s_waitcnt lgkmcnt(0)
    ''')
    srd(A,S_WS,4,5,WS_BYTES)
    srd(A,S_DBG,6,7,256)
    A(f'''
    s_cmp_lg_u32 s{sW}, 0
    s_cbranch_scc1 L_tk_done
    v_mov_b32 v2, 1
    s_lshl_b32 s{sT0}, s{sX}, 2
    v_mov_b32 v3, s{sT0}
    s_mov_b64 exec, 1
    buffer_atomic_add v2, v3, s[{S_DBG}:{S_DBG+3}], 0 offen sc0
    s_waitcnt vmcnt(0)
    v_mov_b32 v4, 0
    ds_write_b32 v4, v2
    s_waitcnt lgkmcnt(0)
    s_mov_b64 exec, -1
    L_tk_done:
    s_barrier
    v_mov_b32 v4, 0
    ds_read_b32 v2, v4
    s_waitcnt lgkmcnt(0)
    v_readfirstlane_b32 s{sP}, v2
    s_cmp_ge_u32 s{sX}, 2
    s_cbranch_scc1 L_end
    s_cmp_ge_u32 s{sP}, 32
    s_cbranch_scc1 L_end
    s_barrier
    s_memtime s[54:55]
    ''')
    A(f'''
    v_lshlrev_b32 v{vL16}, 4, v{vL}
    v_lshrrev_b32 v20, 4, v{vL}          ; g
    v_and_b32 v21, 15, v{vL}             ; n
    v_bfe_u32 v22, v{vL}, 1, 1
    v_mov_b32 v{vIdx}, 0x4444
    v_mov_b32 v23, 0xeeee
    v_cmp_eq_u32 vcc, 1, v22
    s_nop 1
    v_cndmask_b32 v{vIdx}, v{vIdx}, v23, vcc
    s_mov_b64 s[{sEta}:{sEta+1}], vcc
    v_cmp_gt_u32 vcc, 32, v{vL}
    s_nop 1
    s_mov_b64 s[{sLo}:{sLo+1}], vcc
    v_lshrrev_b32 v22, 2, v21
    v_lshl_add_u32 v22, v20, 2, v22
    v_lshlrev_b32 v22, 11, v22
    v_and_b32 v23, 3, v21
    v_lshl_add_u32 v{vPst4}, v23, 4, v22
    s_lshl_b32 s{sT0}, s{sP}, 6
    v_add_u32 v{vPst4}, s{sT0}, v{vPst4}
    v_lshlrev_b32 v22, 2, v20
    v_add_u32 v22, s{sW}, v22
    v_lshlrev_b32 v22, 11, v22
    v_add_u32 v22, s{sT0}, v22
    v_lshl_add_u32 v{vPst1}, v21, 2, v22
    v_and_b32 v22, 1, v20
    v_lshlrev_b32 v22, 1, v22
    v_lshrrev_b32 v24, 1, v20
    v_add_u32 v22, v22, v24
    v_lshlrev_b32 v22, 4, v22
    v_lshl_add_u32 v{vPub}, v23, 2, v22
    v_mul_u32_u24 v22, {2*QP}, v20
    s_lshl_b32 s{sT0}, s{sW}, 6
    v_and_b32 v24, 3, v21
    v_bfe_u32 v25, v21, 2, 1
    v_lshl_add_u32 v24, v25, 3, v24
    v_bfe_u32 v25, v21, 3, 1
    v_lshl_add_u32 v24, v25, 2, v24
    v_lshl_add_u32 v22, v24, 1, v22
    v_add_u32 v22, s{sT0}, v22
    v_add_u32 v{vQw}, {L_QX}, v22
    v_lshrrev_b32 v22, 2, v21
    v_lshlrev_b32 v22, 1, v22
    v_and_b32 v24, 1, v21
    v_add_u32 v22, v22, v24
    v_mul_u32_u24 v22, {QP}, v22
    v_lshl_add_u32 v22, v20, 4, v22
    v_add_u32 v{vQr}, {L_QX}, v22
    v_lshrrev_b32 v22, 2, v21
    v_lshlrev_b32 v22, 1, v22
    v_and_b32 v23, 1, v21
    v_add_u32 v22, v22, v23
    v_mul_u32_u24 v22, {QP}, v22
    v_lshl_add_u32 v22, v20, 4, v22
    v_add_u32 v{vKr}, {L_KM}, v22
    s_lshr_b32 s{sT0}, s{sW}, 1
    s_lshl_b32 s{sT0}, s{sT0}, 10
    s_and_b32 s{sT1}, s{sW}, 1
    s_lshl_b32 s{sT1}, s{sT1}, 3
    s_add_u32 s{sT0}, s{sT0}, s{sT1}
    s_add_u32 s{sT0}, s{sT0}, {L_OX}
    v_add_u32 v{vOw}, s{sT0}, v{vL16}
    s_mul_i32 s{sT0}, s{sW}, {WVW}
    s_add_u32 s{sT0}, s{sT0}, {L_W}
    v_add_u32 v{vWL}, s{sT0}, v{vL16}
    v_lshlrev_b32 v22, 4, v21
    v_lshl_add_u32 v{vKV}, v20, 2, v22
    v_and_b32 v22, 7, v21
    v_mov_b32 v24, 0x3f80
    v_mov_b32 v25, 0x3f800000
    v_and_b32 v23, 1, v22
    v_cmp_eq_u32 vcc, 1, v23
    s_nop 1
    v_cndmask_b32 v24, v24, v25, vcc
    v_lshrrev_b32 v23, 1, v22
    ''')
    for r in range(4):
        A(f'''v_cmp_eq_u32 vcc, {r}, v23
        s_nop 1
        v_cndmask_b32 v{vSel+r}, 0, v24, vcc''')
    A(f'''
    s_lshl_b32 s{sRole}, s{sP}, 1
    s_add_u32 s{sRole}, s{sRole}, s{sW}
    s_cmp_lt_u32 s{sW}, 2
    s_cbranch_scc1 L_role_ok
    s_add_u32 s{sRole}, s{sP}, 64
    s_cmp_eq_u32 s{sW}, 2
    s_cselect_b32 s{sT0}, 1, 0
    s_cmp_lt_u32 s{sP}, 16
    s_cselect_b32 s{sT0}, s{sT0}, 0
    s_cmp_eq_u32 s{sT0}, 1
    s_cselect_b32 s{sRole}, s{sRole}, -1
    L_role_ok:
    s_lshr_b32 s{sT0}, s{sRole}, 4
    s_lshl_b32 s{sT0}, s{sT0}, 10
    s_and_b32 s{sT1}, s{sRole}, 3
    s_lshl_b32 s{sT1}, s{sT1}, 8
    s_add_u32 s{sT0}, s{sT0}, s{sT1}
    s_lshr_b32 s{sT1}, s{sRole}, 2
    s_and_b32 s{sT1}, s{sT1}, 3
    s_lshl_b32 s{sT1}, s{sT1}, 6
    s_add_u32 s{sT0}, s{sT0}, s{sT1}
    s_mul_i32 s{sMemB}, s{sX}, {MEM_X}
    s_add_u32 s{sMemB}, s{sMemB}, {MEM_OFF}
    s_xor_b32 s{sT1}, s{sX}, 1
    s_mul_i32 s{sT1}, s{sT1}, {MEM_X}
    s_add_u32 s{sT1}, s{sT1}, {MEM_OFF}
    s_add_u32 s{sPubL}, s{sMemB}, s{sT0}
    s_add_u32 s{sPubR}, s{sT1}, s{sT0}
    s_add_u32 s{sPubR}, s{sPubR}, 5120
    s_add_u32 s{sRstR}, s{sPubL}, 5120
    s_mul_i32 s{sPartW}, s{sX}, {2*PART_PAR}
    s_add_u32 s{sPartW}, s{sPartW}, {PART_OFF}
    s_lshl_b32 s{sT0}, s{sRole}, 11
    s_add_u32 s{sPartR}, s{sPartW}, s{sT0}
    s_lshl_b32 s{sQ4}, s{sW}, 15
    s_lshl_b32 s{sT0}, s{sW}, 4
    s_mov_b64 s[{sQm}:{sQm+1}], 0xffff
    s_lshl_b64 s[{sQm}:{sQm+1}], s[{sQm}:{sQm+1}], s{sT0}
    s_mov_b32 s{sE0}, 0x000F000F
    s_mov_b32 s{sE0+1}, 0x000F000F
    s_mov_b32 s{sC}, 0x3e0293ee
    s_mov_b32 s{sFail}, 0
    s_mov_b32 s{sGlob}, 0
    s_lshl_b32 s{sT0}, s{sP}, 13
    s_add_u32 s{sKX}, s{sT0}, {KX_OFF}
    s_add_u32 s{sVX}, s{sT0}, {VX_OFF}
    s_cmp_eq_u32 s{sW}, 0
    s_cselect_b32 s{sPfK}, s{sKX}, s{sVX}
    s_lshl_b32 s{sT0}, s{sW}, 11
    s_add_u32 s{sVX}, s{sVX}, s{sT0}
    s_lshl_b32 s{sT0}, s{sP}, 11
    s_lshl_b32 s{sT1}, s{sW}, 9
    s_add_u32 s{sT0}, s{sT0}, s{sT1}
    s_mul_i32 s{sT1}, s{sX}, {VM_OFF-KM_OFF}
    s_add_u32 s{sT0}, s{sT0}, s{sT1}
    s_add_u32 s{sKMo}, s{sT0}, {KM_OFF}
    ''')
    A(f'''
    v_mov_b32 v24, -1
    v_mov_b32 v25, -1
    v_mov_b32 v26, -1
    v_mov_b32 v27, -1
    s_mul_i32 s{sT0}, s{sP}, 10240
    s_add_u32 s{sT0}, s{sT0}, s{sPartW}
    s_mul_i32 s{sT1}, s{sW}, 2560
    s_add_u32 s{sT0}, s{sT0}, s{sT1}
    buffer_store_dwordx4 v[24:27], v{vL16}, s[{S_WS}:{S_WS+3}], s{sT0} offen sc1
    buffer_store_dwordx4 v[24:27], v{vL16}, s[{S_WS}:{S_WS+3}], s{sT0} offen offset:1024 sc1
    s_mov_b32 exec_hi, 0
    buffer_store_dwordx4 v[24:27], v{vL16}, s[{S_WS}:{S_WS+3}], s{sT0} offen offset:2048 sc1
    s_mov_b64 exec, -1
    s_cmp_lg_u32 s{sW}, 0
    s_cbranch_scc1 L_minit_done
    s_mul_i32 s{sT0}, s{sP}, 960
    s_add_u32 s{sT0}, s{sT0}, s{sMemB}
    v_cmp_gt_u32 vcc, 60, v{vL}
    s_and_saveexec_b64 s[{sT2}:{sT2+1}], vcc
    buffer_store_dwordx4 v[24:27], v{vL16}, s[{S_WS}:{S_WS+3}], s{sT0} offen sc1
    s_mov_b64 exec, -1
    L_minit_done:
    s_mul_i32 s{sT7}, s{sW}, {WVW}
    s_add_u32 s{sT7}, s{sT7}, {L_W}
    v_lshrrev_b32 v28, 2, v{vL}
    v_lshlrev_b32 v28, 13, v28
    v_and_b32 v29, 3, v{vL}
    v_lshl_add_u32 v28, v29, 4, v28
    v_lshrrev_b32 v29, 3, v{vL}
    v_mul_u32_u24 v29, 1280, v29
    v_and_b32 v30, 7, v{vL}
    v_lshl_add_u32 v29, v30, 4, v29
    v_lshrrev_b32 v30, 1, v{vL}
    v_mul_u32_u24 v30, 1280, v30
    v_and_b32 v31, 1, v{vL}
    v_lshl_add_u32 v30, v31, 4, v30
    v_lshrrev_b32 v20, 4, v{vL}
    v_bfe_u32 v21, v{vL}, 2, 2
    v_and_b32 v22, 3, v{vL}
    v_lshlrev_b32 v31, 10, v21
    v_lshl_add_u32 v31, v20, 7, v31
    v_lshl_add_u32 v31, v22, 3, v31
    v_lshlrev_b32 v32, 9, v20
    v_lshl_add_u32 v32, v21, 6, v32
    v_lshl_add_u32 v32, v22, 3, v32
    v_add_u32 v31, s{sT7}, v31
    v_add_u32 v32, s{sT7}, v32
    v_and_b32 v23, 1, v20
    v_lshlrev_b32 v33, 12, v23
    v_lshrrev_b32 v23, 1, v20
    v_lshl_add_u32 v33, v23, 9, v33
    v_lshl_add_u32 v33, v21, 7, v33
    v_lshl_add_u32 v33, v22, 3, v33
    v_add_u32 v33, s{sT7}, v33
    v_and_b32 v23, 1, v20
    v_lshlrev_b32 v34, 10, v23
    v_lshrrev_b32 v23, 1, v20
    v_lshl_add_u32 v34, v23, 7, v34
    v_lshl_add_u32 v34, v21, 5, v34
    v_lshl_add_u32 v34, v22, 3, v34
    v_add_u32 v34, s{sT7}, v34
    ''')
    WP=8192
    A(f'''
    s_mul_i32 s{sT0}, s{sP}, 163840
    s_mul_i32 s{sT1}, s{sX}, 640
    s_add_u32 s{sT0}, s{sT0}, s{sT1}
    s_lshl_b32 s{sT1}, s{sW}, 7
    s_add_u32 s{sT2}, s{sT0}, s{sT1}
    s_lshl_b32 s{sT1}, s{sW}, 5
    s_add_u32 s{sT3}, s{sT0}, s{sT1}
    s_add_u32 s{sT3}, s{sT3}, 512
    ''')
    srd(A,S_TMP,64,65,32*128*640*2)
    for i in range(16):
        A(f's_add_u32 s{sT4}, s{sT2}, {i*8*1280}')
        A(f's_add_u32 m0, s{sT7}, {i*1024}')
        A(f'buffer_load_dwordx4 v29, s[{S_TMP}:{S_TMP+3}], s{sT4} offen lds')
    for i in range(4):
        A(f's_add_u32 s{sT4}, s{sT3}, {i*32*1280}')
        A(f's_add_u32 m0, s{sT7}, {16384+i*1024}')
        A(f'buffer_load_dwordx4 v30, s[{S_TMP}:{S_TMP+3}], s{sT4} offen lds')
    A(f'''
    s_mul_i32 s{sT0}, s{sX}, {320*WP}
    s_xor_b32 s{sT1}, s{sX}, 1
    s_mul_i32 s{sT1}, s{sT1}, {320*WP}
    s_lshl_b32 s{sT2}, s{sP}, 8
    s_lshl_b32 s{sT3}, s{sW}, 6
    s_add_u32 s{sT2}, s{sT2}, s{sT3}
    s_add_u32 s{sT0}, s{sT0}, s{sT2}
    s_add_u32 s{sT1}, s{sT1}, s{sT2}
    s_lshl_b32 s{sT6}, s{sW}, 12
    ''')
    ptr={'q':(58,59),'k':(60,61),'v':(62,63)}
    ring=[('q',b) for b in range(10)]+[('k',b) for b in range(5,10)]+[('v',b) for b in range(5,10)]+[('k',0)]
    final=[('v',b) for b in range(5)]+[('k',b) for b in range(2,5)]
    jobs=[]
    slotseq=[5,6,7]+[ (i%8) for i in range(len(ring)-3)]
    for j,(m,b) in enumerate(ring): jobs.append((m,b,slotseq[j]*4096))
    for j,(m,b) in enumerate(final): jobs.append((m,b,j*4096))
    jobs.append(('k',1,None))
    cur=[None]
    def issue(j):
        m,b,sl=jobs[j]
        if cur[0]!=m:
            srd(A,S_TMP,ptr[m][0],ptr[m][1],640*4096*2); cur[0]=m
        basereg=sT0 if b<5 else sT1
        Q=b%5
        for i in range(4):
            A(f's_add_u32 s{sT4}, s{basereg}, {(64*Q+16*i)*WP}')
            if sl is not None: A(f's_add_u32 m0, s{sT7}, {sl+i*1024}')
            else: A(f's_add_u32 m0, s{sT6}, {i*1024}')
            A(f'buffer_load_dwordx4 v28, s[{S_TMP}:{S_TMP+3}], s{sT4} offen lds')
    def consume(j):
        m,b,sl=jobs[j]
        Q=b%5
        areg = 31 if Q<4 else 32
        if sl is None:
            A(f'v_subrev_u32 v35, s{sT7}, v{areg}')
            A(f'v_add_u32 v35, s{sT6}, v35')
            areg=35; sl=0
        ohi,ojh=(512,64) if Q<4 else (2048,256)
        tolds=[]
        for t in range(2):
            kind,base=home(m,t,b)
            if kind=='lds':
                tolds.append((t,base)); kind,base='v',RA+t*8
            for hi in range(2):
                for jh in range(2):
                    A(f'ds_read_b64_tr_b16 {kind}[{base+hi*4+jh*2}:{base+hi*4+jh*2+1}], v{areg} offset:{sl+hi*ohi+jh*ojh+t*32}')
        A('s_waitcnt lgkmcnt(0)')
        for t,off in tolds:
            for hi in range(2):
                A(f'ds_write_b128 v{vWL}, v[{RA+t*8+hi*4}:{RA+t*8+hi*4+3}] offset:{off+hi*1024}')
        if tolds: A('s_waitcnt lgkmcnt(0)')
    for j in range(3): issue(j)
    A('s_waitcnt vmcnt(12)')
    for lt in range(5):
        for k2 in range(2):
            kind,base=WO(lt,k2)
            for hi in range(2):
                for jh in range(2):
                    if lt<4: A(f'ds_read_b64_tr_b16 {kind}[{base+hi*4+jh*2}:{base+hi*4+jh*2+1}], v33 offset:{k2*8192+jh*2048+hi*1024+lt*32}')
                    else:    A(f'ds_read_b64_tr_b16 {kind}[{base+hi*4+jh*2}:{base+hi*4+jh*2+1}], v34 offset:{16384+k2*2048+jh*512+hi*256}')
    A('s_waitcnt lgkmcnt(0)')
    n=len(jobs); issued=3; consumed=0
    lastuse={}
    def slot_free(j):
        sl=jobs[j][2]
        if sl is None: return True
        prev=[jj for jj in range(j) if jobs[jj][2]==sl]
        return (not prev) or max(prev)<consumed
    while consumed<n:
        while issued<n and slot_free(issued) and issued-consumed<8:
            issue(issued); issued+=1
        A(f's_waitcnt vmcnt({4*(issued-consumed-1)})')
        consume(consumed); consumed+=1
    srd(A,S_TMP,56,57,8*640*2)
    A(f'''
    s_barrier
    v_lshrrev_b32 v20, 4, v{vL}
    v_and_b32 v21, 15, v{vL}
    v_lshrrev_b32 v22, 2, v21
    v_lshlrev_b32 v22, 1, v22
    v_and_b32 v23, 1, v21
    v_add_u32 v22, v22, v23
    v_mul_u32_u24 v22, 1280, v22
    v_bfe_u32 v23, v21, 1, 1
    v_lshl_add_u32 v24, v23, 6, v22
    v_lshl_add_u32 v24, v20, 3, v24
    v_lshl_add_u32 v25, v20, 5, v22
    v_lshl_add_u32 v25, v23, 2, v25
    s_mul_i32 s{sT0}, s{sX}, 640
    s_xor_b32 s{sT1}, s{sX}, 1
    s_mul_i32 s{sT1}, s{sT1}, 640
    ''')
    for w in range(4):
        A(f's_cmp_lg_u32 s{sW}, {w}')
        A(f's_cbranch_scc1 L_m0_{w}')
        bl=[b for b in range(10) if b%4==w]
        for k,b in enumerate(bl):
            base=sT0 if b<5 else sT1
            Q=b%5
            for m in range(4):
                d=RA+k*4+m
                if Q<4:
                    A(f'buffer_load_ushort v{d}, v24, s[{S_TMP}:{S_TMP+3}], s{base} offen offset:{128*Q+2*m}')
                    A(f'buffer_load_ushort v{d+16}, v24, s[{S_TMP}:{S_TMP+3}], s{base} offen offset:{128*Q+2*m+32}')
                else:
                    A(f'buffer_load_dword v{d}, v25, s[{S_TMP}:{S_TMP+3}], s{base} offen offset:{512+8*m}')
        A('s_waitcnt vmcnt(0)')
        for k,b in enumerate(bl):
            if b%5<4:
                for m in range(4): A(f'v_lshl_or_b32 v{RA+k*4+m}, v{RA+k*4+m+16}, 16, v{RA+k*4+m}')
        for k,b in enumerate(bl):
            A(f'ds_write_b128 v{vL16}, v[{RA+k*4}:{RA+k*4+3}] offset:{L_MEMA+b*1024}')
        A(f'L_m0_{w}:')
    A('s_waitcnt lgkmcnt(0)')
    A(f'''
    s_waitcnt vmcnt(0)
    s_barrier
    s_cmp_lg_u32 s{sW}, 0
    s_cbranch_scc1 L_arr_done
    s_mov_b64 exec, 1
    v_mov_b32 v20, 1
    v_mov_b32 v21, 128
    buffer_atomic_add v20, v21, s[{S_DBG}:{S_DBG+3}], 0 offen
    s_mov_b32 s{sCnt}, 0
    L_sb_poll:
    buffer_load_dword v20, v21, s[{S_DBG}:{S_DBG+3}], 0 offen sc1
    s_waitcnt vmcnt(0)
    v_readfirstlane_b32 s{sT0}, v20
    s_add_u32 s{sCnt}, s{sCnt}, 1
    s_cmp_ge_u32 s{sCnt}, 2000000
    s_cbranch_scc1 L_sb_out
    s_cmp_lt_u32 s{sT0}, 64
    s_cbranch_scc1 L_sb_poll
    L_sb_out:
    s_mov_b64 exec, -1
    L_arr_done:
    s_barrier
    ''')

WS=f's[{S_WS}:{S_WS+3}]'
def kx_dma(A, segreg):
    A(f'''
    s_add_u32 s{sT1}, s{segreg}, s{sKX}
    s_add_u32 s{sT2}, s{sT1}, 4096
    s_mov_b32 m0, {L_KX}
    s_nop 0
    ''')
    for i in range(4): A(f'buffer_load_dwordx4 v{vL16}, {WS}, s{sT1} offen offset:{1024*i} lds')
    A(f's_mov_b32 m0, {L_KX+4096}')
    A('s_nop 0')
    for i in range(4): A(f'buffer_load_dwordx4 v{vL16}, {WS}, s{sT2} offen offset:{1024*i} lds')

def mem_dma(A, half):
    if CFG.nocomm: return
    o=half*5120
    A(f'''
    s_add_u32 s{sT1}, s{sMemCur}, {o}
    s_add_u32 s{sT2}, s{sMemCur}, {o+4096}
    s_mov_b32 m0, {L_MEMA+o}
    s_nop 0
    ''')
    for i in range(4): A(f'buffer_load_dwordx4 v{vL16}, {WS}, s{sT1} offen offset:{1024*i} {CFG.dmaflags} lds')
    A(f's_mov_b32 m0, {L_MEMA+o+4096}')
    A('s_nop 0')
    A(f'buffer_load_dwordx4 v{vL16}, {WS}, s{sT2} offen {CFG.dmaflags} lds')
    if CFG.dmawait and half==0:
        stamp(A,70); A('s_waitcnt vmcnt(0)'); stamp(A,71)

def rem_dma(A):
    if CFG.nocomm or CFG.norem: return
    l=A.newlabel('L_rd')
    A(f's_cmp_eq_u32 s{sStep}, 0'); A(f's_cbranch_scc1 {l}')
    A(f'''
    s_lshl_b32 s{sT2}, s{sW}, 10
    s_add_u32 s{sT1}, s{sMemCur}, s{sT2}
    s_add_u32 s{sT1}, s{sT1}, 5120
    s_add_u32 m0, s{sT2}, {L_MEMA+5120}
    s_add_u32 s{sT2}, s{sMemCur}, {5120+4096}
    buffer_load_dwordx4 v{vL16}, {WS}, s{sT1} offen {CFG.dmaflags} lds
    s_mov_b32 m0, {L_MEMA+9216}
    s_mov_b64 exec, s[{sQm}:{sQm+1}]
    buffer_load_dwordx4 v{vL16}, {WS}, s{sT2} offen {CFG.dmaflags} lds
    s_mov_b64 exec, -1
    {l}:''')

def w3_only(A, fn, cond_step_nonzero=True):
    l=A.newlabel('L_w3')
    A(f's_cmp_lg_u32 s{sW}, 3')
    A(f's_cbranch_scc1 {l}')
    if cond_step_nonzero:
        A(f's_cmp_eq_u32 s{sStep}, 0')
        A(f's_cbranch_scc1 {l}')
    fn()
    A(f'{l}:')

def tree_check(A, regs, tmps):
    regs=list(regs); t=list(tmps)[:4]
    nch=min(len(t), max(1,(len(regs)+2)//3))
    c=[]
    for k in range(nch):
        if len(regs)>=3:
            A(f'v_max3_u32 v{t[k]}, v{regs[0]}, v{regs[1]}, v{regs[2]}'); regs=regs[3:]; c.append(t[k])
    k=0
    while len(regs)>=2:
        A(f'v_max3_u32 v{c[k%len(c)]}, v{c[k%len(c)]}, v{regs[0]}, v{regs[1]}'); regs=regs[2:]; k+=1
    c2=c+regs
    while len(c2)>1:
        if len(c2)>=3:
            A(f'v_max3_u32 v{c2[0]}, v{c2[0]}, v{c2[1]}, v{c2[2]}'); c2=[c2[0]]+c2[3:]
        else:
            A(f'v_max_u32 v{c2[0]}, v{c2[0]}, v{c2[1]}'); c2=[c2[0]]
    A(f'v_cmp_eq_u32 vcc, -1, v{c2[0]}')

def spin(A, name, half, tmps):
    A(f's_mov_b32 s{sCnt}, 0')
    A(f'{name}:')
    if half==0: w3_only(A, lambda: mem_dma(A,0))
    else: rem_dma(A)
    for b in range(5): A(f'ds_read_b128 v[{RA+4*b}:{RA+4*b+3}], v{vL16} offset:{L_MEMA+half*5120+b*1024}')
    A(f"""s_add_u32 s{sCnt}, s{sCnt}, 1
    s_cmp_ge_u32 s{sCnt}, 400000
    s_cbranch_scc1 L_fail""")
    A('s_waitcnt lgkmcnt(0)')
    A.lq=[]
    if CFG.blk and half==0:
        A('s_mov_b32 s71, 0')
        for b in range(5):
            A(f'v_max3_u32 v86, v{RA+4*b}, v{RA+4*b+1}, v{RA+4*b+2}')
            A(f'v_max_u32 v86, v86, v{RA+4*b+3}')
            A('v_cmp_eq_u32 vcc, -1, v86')
            A('s_nop 4')
            A('s_bcnt1_i32_b64 s69, vcc')
            A('s_min_u32 s69, s69, 15')
            A(f's_lshl_b32 s69, s69, {4*b}')
            A('s_or_b32 s71, s71, s69')
        A(f"""
        s_cmp_lg_u32 s{sStep}, {CFG.stamp_step}
        s_cbranch_scc1 2f
        s_mov_b32 m0, s70
        s_or_b32 s71, s71, 0x7f000000
        s_movreld_b32 s72, s71
        s_add_u32 s70, s70, 1
        s_min_u32 s70, s70, 29
        2:
        """)
    tree_check(A,range(RA,RA+20),tmps)
    stamp(A,20+half)
    A(f's_cbranch_vccnz {name}')

def post(A, a):
    return [f'v_pk_add_f32 v[{a}:{a+1}], v[{a}:{a+1}], v[{a+2}:{a+3}]', f'v_cvt_pk_bf16_f32 v{a}, v{a}, v{a+1}']

def gen_step(A):
    X1=78; X2=82
    A('L_step:')
    stamp(A,1)
    seq=[]
    for b in range(5):
        seq+= [('q',0,b),('v',0,b),('q',1,b),('k',0,b),('v',1,b),('k',1,b)]
    ldsitems=[it for it in seq if home(*it)[0]=='lds']
    land={}; nxt=[0]
    def rd():
        if nxt[0]>=len(ldsitems): return
        it=ldsitems[nxt[0]]; slot=RW+(nxt[0]%3)*8; land[it]=slot
        off=home(*it)[1]
        A.lds(f'ds_read_b128 v[{slot}:{slot+3}], v{vWL} offset:{off}',it)
        A.lds(f'ds_read_b128 v[{slot+4}:{slot+7}], v{vWL} offset:{off+1024}',it)
        nxt[0]+=1
    for _ in range(3): rd()
    A.wl0()
    spin(A,'L_spinL',0,[vT,vT2,86,87])
    stamp(A,2)
    for it in seq:
        m,t,b=it
        h=home(*it)
        if h[0]=='lds':
            A.wl(it)
            smf(A,ACC[m]+4*t,RA+4*b,('v',land[it]))
            rd()
        else:
            smf(A,ACC[m]+4*t,RA+4*b,h)
        if it in CFG.remat: rem_dma(A)
    stamp(A,3)
    RVXn=78
    A(f's_lshl_b32 s{sT7}, s{sStep}, 18')
    A(f's_add_u32 s{sT1}, s{sT7}, s{sVX}')
    if not CFG.novx:
        A(f'buffer_load_dwordx4 v[{RVXn}:{RVXn+3}], v{vL16}, {WS}, s{sT1} offen')
        A(f'buffer_load_dwordx4 v[{RVXn+4}:{RVXn+7}], v{vL16}, {WS}, s{sT1} offen offset:1024')
    if not (CFG.norem or CFG.norstR): spin(A,'L_spinR',1,[vT,vT2,86,87])
    stamp(A,4)
    order=[(T,ks) for ks in range(4) for T in range(2)]
    kxslot=[RA,RA+4,RA+8,RA+12,RA+16,RA,RA+4,RA+8]
    def kxrd(k):
        T,ks=order[k]
        A.lds(f'ds_read_b128 v[{kxslot[k]}:{kxslot[k]+3}], v{vL16} offset:{L_KX+(T*4+ks)*1024}',('kx',k))
    def qw(a,t,base,hi):
        if not hi: A.lds(f'ds_write_b16 v{vQw}, v{a} offset:{t*32+base}','w')
        else: A.lds(f'ds_write_b16_d16_hi v{vQw}, v{a} offset:{t*32+QP+base}','w')
    qs=[(t,b) for b in range(5,10) for t in range(2)]
    fq={4:[f's_add_u32 s{sT1}, s{sT7}, s{sPfK}'],
        5:[f'v_lshlrev_b32 v{vT}, 7, v{vL}'],
        6:[f's_add_u32 s{sT1}, s{sT1}, {1<<18}']}
    for n,(t,b) in enumerate(qs):
        smf(A,aQ+4*t,RA+4*(b-5),home('q',t,b))
        for f in fq.get(n,[]): A(f)
        if n==7 and not CFG.nopf2:
            l=A.newlabel('L_pf')
            A(f's_cmp_ge_u32 s{sW}, 2'); A(f's_cbranch_scc1 {l}')
            A(f's_cmp_ge_u32 s{sStep}, 63'); A(f's_cbranch_scc1 {l}')
            A(f'buffer_load_dword v{vT}, v{vT}, {WS}, s{sT1} offen')
            A(f'{l}:')
    stamp(A,40)
    a0,a1=aQ,aQ+4
    fk={0:['s_nop 0'],1:['s_nop 0'],2:['s_nop 0'],3:['s_nop 0'],
        4:[f'v_add_f32 v{a0}, v{a0}, v{a0+2}', f'v_add_f32 v{a0+1}, v{a0+1}, v{a0+3}'],
        5:[f'v_add_f32 v{a1}, v{a1}, v{a1+2}', f'v_add_f32 v{a1+1}, v{a1+1}, v{a1+3}'],
        6:[f'v_cvt_pk_bf16_f32 v{a0}, v{a0}, v{a0+1}'], 7:[f'v_cvt_pk_bf16_f32 v{a1}, v{a1}, v{a1+1}']}
    for n,(t,b) in enumerate(qs):
        smf(A,aK+4*t,RA+4*(b-5),home('k',t,b))
        for f in fk.get(n,[]): A(f)
        if n==6: stamp(A,401)
        if n==7: qw(a0,0,0,False)
        if n==8: qw(a0,0,0,True); qw(a1,1,0,False)
        if n==9: qw(a1,1,0,True)
    stamp(A,41)
    KB=L_KM-L_QX; b0,b1=aK,aK+4
    for n,(t,b) in enumerate(qs):
        smf(A,aV+4*t,RA+4*(b-5),home('v',t,b))
        if n in (0,1): A('s_nop 0')
        if n==2: A('s_nop 0')
        if n==3:
            A(f'v_add_f32 v{b0}, v{b0}, v{b0+2}'); A(f'v_add_f32 v{b0+1}, v{b0+1}, v{b0+3}')
        if n==4:
            A(f'v_add_f32 v{b1}, v{b1}, v{b1+2}'); A(f'v_add_f32 v{b1+1}, v{b1+1}, v{b1+3}')
        if n==5:
            A(f'v_cvt_pk_bf16_f32 v86, v{b0}, v{b0+1}'); A(f'v_cvt_pk_bf16_f32 v87, v{b1}, v{b1+1}')
        if n==5: stamp(A,421)
        if n==6:
            A.wl('w'); A('s_barrier')
            stamp(A,422)
            qw(86,0,KB,False); qw(86,0,KB,True)
        if n==7: qw(87,1,KB,False); qw(87,1,KB,True); stamp(A,423)
        if n==8:
            for ks in range(2): A.lds(f'ds_read_b128 v[{QF+4*ks}:{QF+4*ks+3}], v{vQr} offset:{ks*64}',('qf',ks))
        if n==9:
            for ks in range(2,4): A.lds(f'ds_read_b128 v[{QF+4*ks}:{QF+4*ks+3}], v{vQr} offset:{ks*64}',('qf',ks))
    stamp(A,42)
    for k in range(0,5): kxrd(k)
    A.wl('w')
    stamp(A,43)
    A('s_barrier')
    stamp(A,44)
    F=[aK,aK+4,RA+12,RA+16]
    for ks in range(2): A.lds(f'ds_read_b128 v[{F[ks]}:{F[ks]+3}], v{vKr} offset:{ks*64}',('kf',ks))
    S0=aQ; S1=aQ+4; S2=RA
    c0,c1=aV,aV+4
    vpost=[f'v_add_f32 v{c0}, v{c0}, v{c0+2}', f'v_add_f32 v{c0+1}, v{c0+1}, v{c0+3}', f'v_add_f32 v{c1}, v{c1}, v{c1+2}', f'v_add_f32 v{c1+1}, v{c1+1}, v{c1+3}',
           f'v_cvt_pk_bf16_f32 v{c0}, v{c0}, v{c0+1}', f'v_cvt_pk_bf16_f32 v{c1}, v{c1}, v{c1+1}']
    for k,(T,ks) in enumerate(order):
        A.wl(('qf',ks)); A.wl(('kx',k))
        acc=S0 if T==0 else S1
        c='0' if ks==0 else f'v[{acc}:{acc+3}]'
        A(f'v_mfma_f32_16x16x32_bf16 v[{acc}:{acc+3}], v[{kxslot[k]}:{kxslot[k]+3}], v[{QF+4*ks}:{QF+4*ks+3}], {c}')
        if k<3: kxrd(5+k)
        if k==3: A.lds(f'ds_read_b128 v[{F[2]}:{F[2]+3}], v{vKr} offset:{2*64}',('kf',2))
        if k==4: A.lds(f'ds_read_b128 v[{F[3]}:{F[3]+3}], v{vKr} offset:{3*64}',('kf',3))
        if k>=2 and vpost: A(vpost.pop(0))
    stamp(A,45)
    zero=[f'v_mov_b32 v{aV+1}, 0', f'v_mov_b32 v{aV+5}, 0', f'v_mov_b64 v[{aV+2}:{aV+3}], 0', f'v_mov_b64 v[{aV+6}:{aV+7}], 0']
    for ks in range(4):
        A.wl(('kf',ks))
        c='0' if ks==0 else f'v[{S2}:{S2+3}]'
        A(f'v_mfma_f32_16x16x32_bf16 v[{S2}:{S2+3}], v[{F[ks]}:{F[ks]+3}], v[{QF+4*ks}:{QF+4*ks+3}], {c}')
        if vpost: A(vpost.pop(0))
        A(zero.pop(0))
    stamp(A,5)
    dump(A,'S',[S0,S0+1,S0+2,S0+3,S1,S1+1,S1+2,S1+3,S2,S2+1,aV,aV+4])
    M=QF; M2=QF+1; PB=QF+4; RL=QF+2
    A(f'v_max3_f32 v{M}, v{S0}, v{S0+1}, v{S0+2}')
    A(f'v_max3_f32 v{M2}, v{S0+3}, v{S1}, v{S1+1}')
    A(f'v_max3_f32 v{M}, v{M}, v{S1+2}, v{S1+3}')
    A(f'v_mov_b32 v{PB+5}, 0')
    A(f'v_mov_b64 v[{PB+6}:{PB+7}], 0')
    A(f's_lshl_b32 s{sT6}, s{sStep}, 16')
    A(f's_add_u32 s{sT6}, s{sT6}, s{sKMo}')
    A(f's_cmp_eq_u32 s{sX}, 0')
    A('s_cbranch_scc1 L_pubd')
    A(f'buffer_store_dword v{aV}, v{vKV}, {WS}, s{sT6} offen {CFG.kvflag}')
    A(f'buffer_store_dword v{aV+4}, v{vKV}, {WS}, s{sT6} offen offset:256 {CFG.kvflag}')
    A('L_pubd:')
    A(f'v_max3_f32 v{M2}, v{M2}, v{S2}, v{S2+1}')
    A(f'v_max_f32 v{M}, v{M}, v{M2}')
    A(f'v_mov_b32 v{M2}, v{M}')
    A('s_nop 1')
    A(f'v_permlane32_swap_b32 v{M}, v{M2}')
    A(f'v_max_f32 v{M}, v{M}, v{M2}')
    A(f'v_mov_b32 v{M2}, v{M}')
    A('s_nop 1')
    A(f'v_permlane16_swap_b32 v{M}, v{M2}')
    A(f'v_max_f32 v{M}, v{M}, v{M2}')
    A(f'v_mul_f32 v{M}, s{sC}, v{M}')
    pairs=[S0,S0+2,S1,S1+2,S2]
    for r in pairs:
        A(f'v_pk_fma_f32 v[{r}:{r+1}], v[{r}:{r+1}], s[{sC2}:{sC2+1}], v[{M}:{M+1}] op_sel_hi:[1,1,0] neg_lo:[0,0,1] neg_hi:[0,0,1]')
    vals=[S0,S0+1,S0+2,S0+3,S1,S1+1,S1+2,S1+3,S2,S2+1]
    for i,r in enumerate(vals):
        A(f'v_exp_f32 v{r}, v{r}')
    A(f'v_cvt_pk_bf16_f32 v{PB}, v{S0}, v{S0+1}')
    A(f'v_cvt_pk_bf16_f32 v{PB+1}, v{S0+2}, v{S0+3}')
    A(f'v_cvt_pk_bf16_f32 v{PB+2}, v{S1}, v{S1+1}')
    A(f'v_cvt_pk_bf16_f32 v{PB+3}, v{S1+2}, v{S1+3}')
    A(f'v_cvt_pk_bf16_f32 v{PB+4}, v{S2}, v{S2+1}')
    stamp(A,51)
    dump(A,'P',[S0,S0+1,S0+2,S0+3,S1,S1+1,S1+2,S1+3,S2,S2+1,M])
    OA=aQ; LA=aK; ONE=aK+4
    if CFG.novx: A('s_nop 0')
    else:
        l=A.newlabel('L_vw')
        A(f's_cmp_eq_u32 s{sX}, 0'); A(f's_cbranch_scc1 {l}c')
        A(f's_cmp_ge_u32 s{sW}, 2'); A(f's_cbranch_scc1 {l}a')
        A('s_waitcnt vmcnt(3)'); A(f's_branch {l}b')
        A(f'{l}a:'); A('s_waitcnt vmcnt(2)'); A(f's_branch {l}b')
        A(f'{l}c:')
        A(f's_cmp_ge_u32 s{sW}, 2'); A(f's_cbranch_scc1 {l}d')
        A('s_waitcnt vmcnt(1)'); A(f's_branch {l}b')
        A(f'{l}d:'); A('s_waitcnt vmcnt(0)')
        A(f'{l}b:')
    A(f'v_mfma_f32_16x16x32_bf16 v[{OA}:{OA+3}], v[{RVXn}:{RVXn+3}], v[{PB}:{PB+3}], 0')
    A(f'v_mov_b32 v{ONE}, 0x3f803f80')
    A(f'v_mov_b32 v{ONE+1}, 0x3f803f80')
    A(f'v_mfma_f32_16x16x32_bf16 v[{OA+4}:{OA+7}], v[{RVXn+4}:{RVXn+7}], v[{PB}:{PB+3}], 0')
    A(f'v_mov_b32 v{ONE+2}, 0x3f803f80')
    A(f'v_mov_b32 v{ONE+3}, 0x3f803f80')
    A(f'v_mfma_f32_16x16x32_bf16 v[{OA}:{OA+3}], v[{aV}:{aV+3}], v[{PB+4}:{PB+7}], v[{OA}:{OA+3}]')
    A(f'v_mfma_f32_16x16x32_bf16 v[{OA+4}:{OA+7}], v[{aV+4}:{aV+7}], v[{PB+4}:{PB+7}], v[{OA+4}:{OA+7}]')
    dump(A,'L',[ONE,ONE+1,ONE+2,ONE+3,PB,PB+1,PB+2,PB+3,PB+4,PB+5,aV,aV+1,aV+4,aV+5])
    A(f'v_mfma_f32_16x16x32_bf16 v[{LA}:{LA+3}], v[{ONE}:{ONE+3}], v[{PB}:{PB+3}], 0')
    A(f'v_mfma_f32_16x16x32_bf16 v[{LA}:{LA+3}], v[{ONE}:{ONE+3}], v[{PB+4}:{PB+7}], v[{LA}:{LA+3}]')
    A('s_nop 5')
    for r in range(2): A(f'v_cndmask_b32_e64 v{OA+r}, v{OA+r}, v{OA+2+r}, s[{sEta}:{sEta+1}]')
    for r in range(2): A(f'v_cndmask_b32_e64 v{OA+4+r}, v{OA+4+r}, v{OA+6+r}, s[{sEta}:{sEta+1}]')
    A(f'v_rcp_f32 v{RL}, v{LA}')
    A('s_nop 0')
    A(f'v_pk_mul_f32 v[{OA}:{OA+1}], v[{OA}:{OA+1}], v[{RL}:{RL+1}] op_sel_hi:[1,0]')
    A(f'v_pk_mul_f32 v[{OA+4}:{OA+5}], v[{OA+4}:{OA+5}], v[{RL}:{RL+1}] op_sel_hi:[1,0]')
    dump(A,'O',[OA,OA+1,OA+4,OA+5,RL,LA])
    A(f'v_cvt_pk_bf16_f32 v{ONE}, v{OA}, v{OA+1}')
    A(f'v_cvt_pk_bf16_f32 v{ONE+1}, v{OA+4}, v{OA+5}')
    A.lds(f'ds_write_b64 v{vOw}, v[{ONE}:{ONE+1}]','ow')
    stamp(A,52)
    AY=RA; YA=RA+8
    for r in range(YA,YA+20,2): A(f'v_mov_b64 v[{r}:{r+1}], 0')
    A.wl0()
    A('s_barrier')
    stamp(A,6)
    A.lds(f'ds_read_b128 v[{AY}:{AY+3}], v{vL16} offset:{L_OX}','ay0')
    A.lds(f'ds_read_b128 v[{AY+4}:{AY+7}], v{vL16} offset:{L_OX+1024}','ay1')
    A(f"""
    s_mul_i32 s{sT0}, s{sPar}, {PART_PAR}
    s_add_u32 s{sT1}, s{sT0}, s{sPartW}
    s_add_u32 s{sT2}, s{sT1}, s{sQ4}
    s_add_u32 s{sT3}, s{sT1}, {4*32768}
    """)
    fill=[]
    if not CFG.nocomm:
        fill=[f'v_mov_b64 v[{aK}:{aK+1}], -1', f'v_mov_b64 v[{aK+2}:{aK+3}], -1', f's_lshl_b32 s{sT6}, s{sW}, 10', f'v_add_u32 v{vT2}, s{sT6}, v{vL16}',
              f'ds_write_b128 v{vT2}, v[{aK}:{aK+3}] offset:{L_MEMA}', f'ds_write_b128 v{vL16}, v[{aK}:{aK+3}] offset:{L_MEMA+4096}',
              f'ds_write_b128 v{vT2}, v[{aK}:{aK+3}] offset:{L_MEMA+5120}', f'ds_write_b128 v{vL16}, v[{aK}:{aK+3}] offset:{L_MEMA+9216}']
    A.wl('ay0')
    for lt in range(5):
        smf(A,YA+4*lt,AY,WO(lt,0))
        if lt<4 and fill: A(fill.pop(0))
    A.wl('ay1')
    YP=aQ
    for lt in range(5):
        smf(A,YA+4*lt,AY+4,WO(lt,1))
        if lt<4 and fill: A.lds(fill.pop(0),'rs')
    A('s_nop 3')
    for lt in range(5):
        a=YA+4*lt
        A(f'v_pk_add_f32 v[{a}:{a+1}], v[{a}:{a+1}], v[{a+2}:{a+3}]')
    for lt in range(5):
        a=YA+4*lt
        A(f'v_cvt_pk_bf16_f32 v{YP+lt}, v{a}, v{a+1}')
    dump(A,'Y',[YP,YP+1,YP+2,YP+3,YP+4])
    A.wl0()
    A(f"""
    s_cmp_eq_u32 s{sStep}, 63
    s_cbranch_scc1 L_last
    buffer_store_dwordx4 v[{YP}:{YP+3}], v{vPst4}, {WS}, s{sT2} offen
    buffer_store_dword v{YP+4}, v{vPst1}, {WS}, s{sT3} offen
    L_last:
    """)
    stamp(A,7)
    A(f"""
    s_cmp_lg_u32 s{sX}, 0
    s_cbranch_scc1 L_nokm
    v_lshrrev_b32 v{vT}, 4, v{vL}
    s_lshl_b32 s{sT1}, s{sW}, 1
    v_add_u32 v{vT}, s{sT1}, v{vT}
    v_mul_u32_u24 v{vT2}, {QP}, v{vT}
    v_and_b32 v86, 15, v{vL}
    v_lshl_add_u32 v{vT2}, v86, 4, v{vT2}
    v_lshlrev_b32 v{vT}, 8, v{vT}
    v_lshl_add_u32 v{vT}, v86, 4, v{vT}
    s_mov_b32 exec_hi, 0
    ds_read_b128 v[{RW}:{RW+3}], v{vT2} offset:{L_KM}
    s_lshl_b32 s{sT1}, s{sStep}, 16
    s_lshl_b32 s{sT2}, s{sP}, 11
    s_add_u32 s{sT1}, s{sT1}, s{sT2}
    s_add_u32 s{sT1}, s{sT1}, {KM_OFF}
    s_waitcnt lgkmcnt(0)
    buffer_store_dwordx4 v[{RW}:{RW+3}], v{vT}, {WS}, s{sT1} offen {CFG.kvflag}
    s_mov_b64 exec, -1
    L_nokm:
    s_cmp_eq_u32 s{sStep}, 63
    s_cbranch_scc1 L_done
    """)
    A('L_cut:')
    if CFG.cut is not None:
        A(f's_cmp_eq_u32 s{sStep}, 63'); A('s_cbranch_scc1 L_done')
    A.lq=[]
    A(f"""
    s_add_u32 s{sSlot}, s{sSlot}, 1
    s_cmp_eq_u32 s{sSlot}, 3
    s_cselect_b32 s{sSlot}, 0, s{sSlot}
    s_mul_i32 s{sT4}, s{sSlot}, 10240
    s_add_u32 s{sMemCur}, s{sT4}, s{sMemB}
    s_add_u32 s{sT5}, s{sSlot}, 2
    s_cmp_ge_u32 s{sT5}, 3
    s_cselect_b32 s{sT6}, 3, 0
    s_sub_u32 s{sT5}, s{sT5}, s{sT6}
    s_mul_i32 s{sT5}, s{sT5}, 10240
    s_add_u32 s{sT7}, s{sStep}, 1
    s_lshl_b32 s{sT7}, s{sT7}, 18
    """)
    if not CFG.nokx: w3_only(A, lambda: kx_dma(A,sT7), cond_step_nonzero=False)
    if CFG.kxwait:
        stamp(A,90); A('s_waitcnt vmcnt(0)'); stamp(A,91)
    for r in range(aQ,aV+8,2): A(f'v_mov_b64 v[{r}:{r+1}], 0')
    if CFG.nocomm: A('s_branch L_nored')
    A(f"""
    s_cmp_eq_u32 s{sRole}, -1
    s_cbranch_scc1 L_nored
    s_add_u32 s{sT0}, s{sT0}, s{sPartR}
    s_mov_b32 s{sCnt}, 0
    """)
    nops(A,CFG.dP)
    D=RA+8
    A(f"""
    L_pollP:
    buffer_load_dwordx4 v[{RA}:{RA+3}], v{vL16}, {WS}, s{sT0} offen sc1
    buffer_load_dwordx4 v[{RA+4}:{RA+7}], v{vL16}, {WS}, s{sT0} offen offset:1024 sc1
    s_add_u32 s{sCnt}, s{sCnt}, 1
    s_cmp_ge_u32 s{sCnt}, 200000
    s_cbranch_scc1 L_fail
    s_add_u32 s{sT1}, s{sPubL}, s{sT4}
    s_add_u32 s{sT2}, s{sPubR}, s{sT4}
    s_add_u32 s{sT3}, s{sPubL}, s{sT5}
    s_add_u32 s{sT6}, s{sRstR}, s{sT5}
    s_waitcnt vmcnt(0)
    """)
    tree_check(A,range(RA,RA+8),[vT,vT2,86])
    stamp(A,30)
    A(f"""
    s_cbranch_vccnz L_pollP
    v_mfma_f32_16x16x32_bf16 v[{D}:{D+3}], v[{vSel}:{vSel+3}], v[{RA}:{RA+3}], 0
    v_mfma_f32_16x16x32_bf16 v[{D}:{D+3}], v[{vSel}:{vSel+3}], v[{RA+4}:{RA+7}], v[{D}:{D+3}]
    v_mov_b64 v[{D+4}:{D+5}], -1
    v_mov_b64 v[{D+6}:{D+7}], -1
    s_nop 5
    """)
    for sh in (8,4):
        for r in range(4): A(f'v_add_f32_dpp v{D+r}, v{D+r}, v{D+r} row_ror:{sh} row_mask:0xf bank_mask:0xf')
    p_r=f'buffer_store_dword v{RA}, v{vPub}, {WS}, s{sT2} offen sc1'; p_l=f'buffer_store_dword v{RA}, v{vPub}, {WS}, s{sT1} offen'
    PUBS=(p_r+'\n'+p_l) if CFG.puborder==0 else (p_l+'\n'+p_r)
    if CFG.norem: PUBS=p_l
    A(f"""
    v_cvt_pk_bf16_f32 v{RA}, v{D}, v{D+2}
    v_cvt_pk_bf16_f32 v{RA+1}, v{D+1}, v{D+3}
    v_cndmask_b32_e64 v{RA}, v{RA+1}, v{RA}, s[{sLo}:{sLo+1}]
    s_mov_b64 exec, s[{sE0}:{sE0+1}]
    {PUBS}
    buffer_store_dword v{D+4}, v{vPub}, {WS}, s{sT3} offen
    {'s_nop 0' if (CFG.norem or CFG.norstR) else f'buffer_store_dword v{D+4}, v{vPub}, {WS}, s{sT6} offen sc1'}
    s_mov_b64 exec, -1
    buffer_store_dwordx4 v[{D+4}:{D+7}], v{vL16}, {WS}, s{sT0} offen
    buffer_store_dwordx4 v[{D+4}:{D+7}], v{vL16}, {WS}, s{sT0} offen offset:1024
    L_nored:
    """)
    stamp(A,8)
    if CFG.dW3:
        l=A.newlabel('L_dw')
        A(f's_cmp_lg_u32 s{sW}, 3'); A(f's_cbranch_scc1 {l}')
        nops(A,CFG.dW3)
        A(f'{l}:')
    nops(A,CFG.dL)
    A(f"""
    s_xor_b32 s{sPar}, s{sPar}, 1
    s_add_u32 s{sStep}, s{sStep}, 1
    s_branch L_step
    """)

def gen(name=KN, standalone=True, **kw):
    for k,v in kw.items(): setattr(CFG,k,v)
    A=Sched()
    if standalone:
        A('; @launch grid=(256,1,1) block=(256,1,1) lds=163840')
        A('.amdgcn_target "amdgcn-amd-amdhsa--gfx950"')
        A('.text')
    A.raw(kernel_header(name))
    gen_startup(A)
    A(f'''
    s_mov_b32 s{sStep}, 0
    s_mov_b32 s{sSlot}, 0
    s_mov_b32 s{sPar}, 0
    s_mov_b32 s{sMemCur}, 0
    s_mov_b32 s{sC2}, 0x3e0293ee
    s_mov_b32 s{sC2+1}, 0x3e0293ee
    s_mov_b32 s70, 0
    ''')
    for i in range(30): A(f's_mov_b32 s{72+i}, 0')
    A(f's_mov_b32 s{sT7}, 0')
    w3_only(A, lambda: kx_dma(A,sT7), cond_step_nonzero=False)
    A('s_waitcnt vmcnt(0)')
    A('s_barrier')
    for r in range(aQ,aV+8): A(f'v_mov_b32 v{r}, 0')
    A('s_memtime s[66:67]')
    A('s_memrealtime s[58:59]')
    A('s_waitcnt lgkmcnt(0)')
    A(f's_sub_u32 s56, s66, s54')
    A(f's_mov_b32 s54, s66')
    gen_step(A)
    A(f'''
    L_fail:
    s_mov_b32 s{sFail}, 1
    s_mov_b64 exec, -1
    L_done:
    s_memtime s[66:67]
    s_memrealtime s[60:61]
    s_waitcnt lgkmcnt(0)
    s_sub_u32 s60, s60, s58
    s_sub_u32 s{sT0}, s66, s54
    s_lshl_b32 s{sT1}, s{sX}, 5
    s_add_u32 s{sT1}, s{sT1}, s{sP}
    s_lshl_b32 s{sT1}, s{sT1}, 2
    s_add_u32 s{sT1}, s{sT1}, s{sW}
    s_lshl_b32 s{sT1}, s{sT1}, 8
    s_add_u32 s{sT1}, s{sT1}, {STAMP_OFF}
    ''')
    for i in range(30): A(f'v_writelane_b32 v20, s{72+i}, {i}')
    A(f'''
    v_writelane_b32 v20, s60, 60
    v_writelane_b32 v20, s56, 61
    v_writelane_b32 v20, s{sT0}, 62
    v_writelane_b32 v20, s{sFail}, 63
    v_lshlrev_b32 v21, 2, v{vL}
    buffer_store_dword v20, v21, s[{S_WS}:{S_WS+3}], s{sT1} offen
    s_waitcnt vmcnt(0)
    L_end:
    s_endpgm
    ''')
    A.raw(kernel_desc(name))
    return A.text()

if __name__=='__main__':
    import sys
    open(sys.argv[1] if len(sys.argv)>1 else 'chain2.s','w').write(gen())
```

```python
from asmlib import *
from layout import *

def srd(A, base, lo, hi, nbytes):
    A(f's_mov_b32 s{base}, s{lo}')
    A(f's_and_b32 s{base+1}, s{hi}, 0xffff')
    A(f's_mov_b32 s{base+2}, {nbytes}')
    A(f's_mov_b32 s{base+3}, 0x20000')

S_WS=8
S_A=12
S_W=16
sW=22
sJ=23

def common_prologue(A):
    A(f'''
    s_load_dwordx2 s[4:5], s[0:1], 112       ; ws
    s_load_dwordx4 s[72:75], s[0:1], 0       ; x, wqkv
    s_load_dwordx4 s[76:79], s[0:1], 16
    s_load_dwordx4 s[80:83], s[0:1], 40
    s_load_dwordx4 s[84:87], s[0:1], 56
    s_load_dwordx2 s[88:89], s[0:1], 72      ; Wo
    s_load_dwordx4 s[92:95], s[0:1], 88
    s_load_dwordx2 s[6:7], s[0:1], 104       ; dbg
    v_lshrrev_b32 v1, 6, v0
    v_and_b32 v0, 63, v0
    s_nop 1
    v_readfirstlane_b32 s{sW}, v1
    s_waitcnt lgkmcnt(0)
    ''')
    srd(A,S_WS,4,5,WS_BYTES)
P_X=72; P_WQKV=74; P_WPHI=76; P_WO_A=78; P_MEM0=80; P_WQ=82; P_WK=84; P_WV=86; P_WO=88; P_GATE=92; P_OUT=94

class G32:
    LW=[0,32768,65536]
    LA=[98304,114688,131072]
    vAd=2
    vWd=4
    vAr=6
    vBr=10
    vBr2=64
    FA=16
    FB=32
    ACC=128
    def __init__(s, A, apitch, wpitch, niter, swap=False):
        s.A=A; s.apitch=apitch; s.wpitch=wpitch; s.niter=niter
    def setup(s):
        A=s.A
        A(f'''
        v_lshrrev_b32 v14, 3, v0
        v_mul_u32_u24 v14, {s.apitch}, v14
        v_and_b32 v15, 7, v0
        v_lshrrev_b32 v16, 4, v0
        v_xor_b32 v17, v15, v16
        v_lshl_add_u32 v{s.vAd}, v17, 4, v14          ; even i
        v_xor_b32 v17, 4, v17
        v_lshl_add_u32 v{s.vAd+1}, v17, 4, v14        ; odd i
        v_lshrrev_b32 v14, 5, v0
        v_mul_lo_u32 v14, v14, s{40}          ; * wpitch (s40)
        v_and_b32 v15, 31, v0
        v_lshrrev_b32 v16, 5, v0
        v_lshlrev_b32 v16, 2, v16
        v_xor_b32 v17, v15, v16
        v_lshl_add_u32 v{s.vWd}, v17, 4, v14
        v_xor_b32 v17, 8, v17
        v_lshl_add_u32 v{s.vWd+1}, v17, 4, v14
        s_and_b32 s41, s{sW}, 1
        s_lshl_b32 s41, s41, 13               ; 64 rows * 128B
        v_and_b32 v14, 31, v0
        v_lshlrev_b32 v15, 7, v14
        s_add_u32 s41, s41, {s.LA[0]}
        v_add_u32 v15, s41, v15
        v_lshrrev_b32 v16, 1, v14
        v_and_b32 v16, 7, v16
        v_lshrrev_b32 v17, 5, v0              ; hh
        v_xor_b32 v16, v16, v17
        ''')
        for ks in range(4):
            A(f'v_xor_b32 v17, {2*ks}, v16')
            A(f'v_lshl_add_u32 v{s.vAr+ks}, v17, 4, v15')
        A(f'''
        v_bfe_u32 v14, v0, 2, 2               ; r
        v_lshrrev_b32 v15, 5, v0              ; hh
        v_lshlrev_b32 v15, 3, v15
        v_add_u32 v15, v15, v14               ; 8hh + r
        v_lshlrev_b32 v15, 9, v15             ; *512
        v_bfe_u32 v16, v0, 4, 1
        v_lshl_add_u32 v15, v16, 5, v15
        v_and_b32 v16, 3, v0
        v_lshl_add_u32 v15, v16, 3, v15
        s_lshr_b32 s41, s{sW}, 1
        s_lshl_b32 s41, s41, 2                ; 4wn
        ''')
        for nt in range(4):
            A(f's_add_u32 s42, s41, {nt}')
            A(f'v_xor_b32 v16, s42, v14')
            A(f'v_lshl_add_u32 v{s.vBr+nt}, v16, 6, v15')
            A(f'v_add_u32 v{s.vBr2+nt}, 0x10000, v{s.vBr+nt}')
    def dma(s, buf, sA, sWt):
        A=s.A
        out=[]
        for j in range(4):
            out.append([f's_add_u32 s44, s{sA}, s{46+j}', f's_add_u32 m0, s50, {s.LA[buf]+j*1024}', f'buffer_load_dwordx4 v{s.vAd+(j&1)}, s[{S_A}:{S_A+3}], s44 offen lds'])
        for j in range(8):
            out.append([f's_add_u32 s44, s{sWt}, s{52+j}', f's_add_u32 m0, s51, {s.LW[buf]+j*1024}', f'buffer_load_dwordx4 v{s.vWd+(j&1)}, s[{S_W}:{S_W+3}], s44 offen lds'])
        return out
    def dma_consts(s):
        A=s.A
        A(f's_mul_i32 s45, s{sW}, {4*8*s.apitch}')
        for j in range(4): A(f's_add_u32 s{46+j}, s45, {j*8*s.apitch}')
        A(f's_mul_i32 s45, s{sW}, s40')
        A(f's_lshl_b32 s45, s45, 4')
        for j in range(8):
            A(f's_mul_i32 s44, s40, {2*j}')
            A(f's_add_u32 s{52+j}, s45, s44')
        A(f's_lshl_b32 s50, s{sW}, 12')
        A(f's_lshl_b32 s51, s{sW}, 13')
    def compute(s, buf, swap, fill, first=False):
        A=s.A
        def rdA(ks,st):
            for mt in range(2):
                d=s.FA+st*8+mt*4
                A.lds(f'ds_read_b128 v[{d}:{d+3}], v{s.vAr+ks} offset:{s.LA[buf]-s.LA[0]+mt*4096}',('A',ks))
        def rdB(ks,st):
            for nt in range(4):
                d=s.FB+st*16+nt*4
                for jh in range(2):
                    br=(s.vBr if buf<2 else s.vBr2)+nt; off=(s.LW[buf] if buf<2 else 0)+(16*ks+4*jh)*512
                    A.lds(f'ds_read_b64_tr_b16 v[{d+2*jh}:{d+2*jh+1}], v{br} offset:{off}',('B',ks))
        rdA(0,0); rdB(0,0)
        for ks in range(4):
            st=ks&1
            if ks<3:
                rdA(ks+1,st^1); rdB(ks+1,st^1)
            A.wl(('B',ks))
            n=0
            for mt in range(2):
                for nt in range(4):
                    acc=s.ACC+(mt*4+nt)*16
                    a=f'v[{s.FA+st*8+mt*4}:{s.FA+st*8+mt*4+3}]'; b=f'v[{s.FB+st*16+nt*4}:{s.FB+st*16+nt*4+3}]'
                    if swap: a,b=b,a
                    c = '0' if (first and ks==0) else f'v[{acc}:{acc+15}]'
                    A(f'v_mfma_f32_32x32x16_bf16 v[{acc}:{acc+15}], {a}, {b}, {c}')
                    if fill and n%2==1:
                        for x in fill.pop(0): A(x)
                    n+=1
        while fill:
            for x in fill.pop(0): A(x)

LAOFFMAX=65535

def job_proj(A, name='JP', endlabel='L_end'):
    g=G32(A,1280,8192,10)
    A(f'{name}:')
    A(f'''
    s_lshr_b32 s24, s{sJ}, 8              ; mat
    s_bfe_u32 s25, s{sJ}, 0x40004         ; mb
    s_and_b32 s26, s{sJ}, 15              ; nb
    s_mov_b32 s40, 8192
    ''')
    srd(A,S_A,P_X,P_X+1,2048*640*2)
    A(f'''
    s_cmp_eq_u32 s24, 0
    s_cselect_b32 s28, s{P_WK}, s{P_WV}
    s_cselect_b32 s29, s{P_WK+1}, s{P_WV+1}
    s_cmp_eq_u32 s24, 2
    s_cselect_b32 s28, s{P_WQ}, s28
    s_cselect_b32 s29, s{P_WQ+1}, s29
    ''')
    srd(A,S_W,28,29,640*4096*2)
    g.setup(); g.dma_consts()
    A(f'''
    s_mul_i32 s30, s25, {128*1280}
    s_lshl_b32 s31, s26, 9
    ''')
    def adv():
        return [[f's_add_u32 s30, s30, 128', f's_add_u32 s31, s31, {64*8192}']]
    for k in range(2):
        for grp in g.dma(k,30,31):
            for x in grp: A(x)
        for x in adv()[0]: A(x)
    for swap in (1,0):
        lab=f'{name}_sw{swap}'
        if swap==1:
            A(f's_cmp_eq_u32 s24, 1'); A(f's_cbranch_scc1 {name}_sw0')
        A(f'{lab}:')
        for k in range(10):
            A(f's_waitcnt vmcnt({12 if k<9 else 0})')
            A('s_barrier')
            fill=[]
            if k+2<10: fill=g.dma((k+2)%3,30,31)+adv()
            A.lq=[]
            g.compute(k%3,swap,fill,first=(k==0))
        A('s_nop 15'); A('s_nop 3')
        A(f'''
        s_lshl_b32 s32, s25, 2
        s_and_b32 s33, s{sW}, 1
        s_lshl_b32 s33, s33, 1
        s_add_u32 s32, s32, s33
        s_lshl_b32 s32, s32, 5
        s_lshl_b32 s33, s26, 1
        s_add_u32 s32, s32, s33
        s_lshr_b32 s33, s{sW}, 1
        s_add_u32 s32, s32, s33
        s_lshl_b32 s32, s32, 13
        s_lshl_b32 s33, s24, 24
        s_add_u32 s32, s32, s33
        v_lshrrev_b32 v14, 5, v0            ; hh
        v_and_b32 v15, 31, v0               ; n
        ''')
        if swap==0:
            A('''
            v_lshrrev_b32 v16, 4, v15
            v_lshlrev_b32 v16, 10, v16
            v_and_b32 v17, 15, v15
            v_lshl_add_u32 v17, v14, 4, v17
            v_lshl_add_u32 v16, v17, 4, v16
            ''')
            offs=lambda nt,u: nt*2048+u*512
        else:
            A('''
            v_bfe_u32 v16, v15, 3, 1
            v_lshlrev_b32 v16, 12, v16
            v_lshrrev_b32 v17, 4, v15
            v_lshlrev_b32 v17, 3, v17
            v_bfe_u32 v18, v15, 2, 1
            v_lshl_add_u32 v17, v18, 2, v17
            v_and_b32 v18, 3, v15
            v_add_u32 v17, v17, v18
            v_lshl_add_u32 v17, v14, 4, v17
            v_lshl_add_u32 v16, v17, 4, v16
            ''')
            offs=lambda nt,u: nt*1024+u*512
        for mt in range(2):
            if mt==1: A(f's_add_u32 s32, s32, {32*8192}')
            for nt in range(4):
                acc=g.ACC+(mt*4+nt)*16
                for u in range(2):
                    d=20+((nt*2+u)%4)*4
                    for j in range(4): A(f'v_cvt_pk_bf16_f32 v{d+j}, v{acc+8*u+2*j}, v{acc+8*u+2*j+1}')
                    o=offs(nt,u)
                    if o<4096: A(f'buffer_store_dwordx4 v[{d}:{d+3}], v16, s[{S_WS}:{S_WS+3}], s32 offen offset:{o}')
                    else:
                        A(f's_add_u32 s33, s32, {o&~4095}')
                        A(f'buffer_store_dwordx4 v[{d}:{d+3}], v16, s[{S_WS}:{S_WS+3}], s33 offen offset:{o&4095}')
        A(f's_branch {endlabel}')
```

```python
from asmlib import *
from layout import *
from gemm import *

def job_prep(A, name='JPREP', endlabel='L_end'):
    A(f'{name}:')
    srd(A,S_A,P_WQKV,P_WQKV+1,640*1920*2)
    srd(A,S_W,P_WPHI,P_WPHI+1,32*400*2)
    A(f'''
    s_lshr_b32 s24, s{sJ}, 1              ; h
    s_and_b32 s25, s{sJ}, 1               ; which
    s_lshl_b32 s26, s{sW}, 6
    v_add_u32 v1, s26, v0                 ; tid
    s_mul_i32 s27, s24, 800
    v_lshlrev_b32 v2, 2, v1
    v_cmp_gt_u32 vcc, 200, v1
    s_and_saveexec_b64 s[28:29], vcc
    buffer_load_dword v3, v2, s[{S_W}:{S_W+3}], s27 offen
    s_waitcnt vmcnt(0)
    v_lshlrev_b32 v4, 16, v3
    v_and_b32 v5, 0xffff0000, v3
    v_lshlrev_b32 v6, 3, v1
    ds_write_b64 v6, v[4:5]
    s_mov_b64 exec, s[28:29]
    s_waitcnt lgkmcnt(0)
    s_barrier
    s_mul_i32 s27, s24, 40
    s_mul_i32 s28, s25, 1280
    s_add_u32 s27, s27, s28
    s_mul_i32 s30, s24, 40
    s_add_u32 s30, s30, s28
    s_add_u32 s30, s30, {WC_OFF}
    s_mov_b32 s31, 0
    {name}_row:
    v_add_u32 v2, s31, v1                 ; d
    v_cmp_gt_u32 vcc, 640, v2
    s_and_saveexec_b64 s[28:29], vcc
    s_cbranch_execz {name}_skip
    v_mul_u32_u24 v3, 3840, v2
    ''')
    for i in range(5): A(f'buffer_load_dwordx2 v[{10+2*i}:{11+2*i}], v3, s[{S_A}:{S_A+3}], s27 offen offset:{8*i}')
    A('s_waitcnt vmcnt(0)')
    for i in range(10):
        A(f'v_lshlrev_b32 v{20+2*i}, 16, v{10+i}')
        A(f'v_and_b32 v{21+2*i}, 0xffff0000, v{10+i}')
    A('v_mov_b32 v4, 0')
    for fq in range(5):
        for e in range(20):
            A(f'ds_read_b128 v[{44+4*(e%4)}:{47+4*(e%4)}], v4 offset:{(e*20+4*fq)*4}')
            if e%4==3 or e==19:
                A('s_waitcnt lgkmcnt(0)')
                for ee in range(e-3,e+1):
                    for r in range(4):
                        if ee==0: A(f'v_mul_f32 v{60+r}, v{20+ee}, v{44+4*(ee%4)+r}')
                        else: A(f'v_fmac_f32 v{60+r}, v{20+ee}, v{44+4*(ee%4)+r}')
        A(f'v_cvt_pk_bf16_f32 v{64+2*fq}, v60, v61')
        A(f'v_cvt_pk_bf16_f32 v{65+2*fq}, v62, v63')
    A('v_mul_u32_u24 v3, 2560, v2')
    for i in range(5): A(f'buffer_store_dwordx2 v[{64+2*i}:{65+2*i}], v3, s[{S_WS}:{S_WS+3}], s30 offen offset:{8*i}')
    A(f'''
    {name}_skip:
    s_mov_b64 exec, s[28:29]
    s_add_u32 s31, s31, 256
    s_cmp_lt_u32 s31, 768
    s_cbranch_scc1 {name}_row
    ''')
    srd(A,S_A,P_X,P_X+1,2048*640*2)
    srd(A,S_W,P_GATE,P_GATE+1,640*2)
    A(f'''
    v_mul_u32_u24 v2, 20, v0
    ''')
    for i in range(5): A(f'buffer_load_dword v{10+i}, v2, s[{S_W}:{S_W+3}], 0 offen offset:{4*i}')
    A(f'''
    s_lshl_b32 s24, s{sJ}, 5
    s_lshl_b32 s25, s{sW}, 3
    s_add_u32 s24, s24, s25               ; token0
    s_mul_i32 s25, s24, 1280
    ''')
    for t in range(8):
        for i in range(5): A(f'buffer_load_dword v{20+5*t+i}, v2, s[{S_A}:{S_A+3}], s25 offen offset:{4*i}')
        A('s_add_u32 s25, s25, 1280')
    A('s_waitcnt vmcnt(0)')
    for i in range(5):
        A(f'v_lshlrev_b32 v{60+2*i}, 16, v{10+i}')
        A(f'v_and_b32 v{61+2*i}, 0xffff0000, v{10+i}')
    for t in range(8):
        for i in range(5):
            r=20+5*t+i
            A(f'v_lshlrev_b32 v70, 16, v{r}')
            A(f'v_and_b32 v71, 0xffff0000, v{r}')
            if i==0: A(f'v_mul_f32 v{72+t}, v70, v60')
            else: A(f'v_fmac_f32 v{72+t}, v70, v{60+2*i}')
            A(f'v_fmac_f32 v{72+t}, v71, v{61+2*i}')
    for sh in (1,2,4,8):
        A('s_nop 1')
        for t in range(8): A(f'v_add_f32_dpp v{72+t}, v{72+t}, v{72+t} row_ror:{sh} row_mask:0xf bank_mask:0xf')
    for sw in ('16','32'):
        for t in range(8):
            A(f'v_mov_b32 v70, v{72+t}')
            A('s_nop 1')
            A(f'v_permlane{sw}_swap_b32 v{72+t}, v70')
            A(f'v_add_f32 v{72+t}, v{72+t}, v70')
    A('v_mov_b32 v80, v72')
    for t in range(1,8):
        A(f'v_cmp_eq_u32 vcc, {t}, v0'); A('s_nop 1'); A(f'v_cndmask_b32 v80, v80, v{72+t}, vcc')
    A(f'''
    v_mul_f32 v80, 0xbfb8aa3b, v80        ; -log2e * x
    v_exp_f32 v80, v80
    s_nop 0
    v_add_f32 v80, 1.0, v80
    v_rcp_f32 v80, v80
    s_lshl_b32 s24, s24, 2
    s_add_u32 s24, s24, {G_OFF}
    v_lshlrev_b32 v2, 2, v0
    s_mov_b64 exec, 0xff
    buffer_store_dword v80, v2, s[{S_WS}:{S_WS+3}], s24 offen
    s_mov_b64 exec, -1
    s_branch {endlabel}
    ''')

class G16:
    LX=[0,16384,32768]
    LWB=49152
    vXd=2
    vWd=4
    vXr=10
    vWr=12
    FX=16
    FW=32
    ACC=64
    def __init__(s,A,nmat): s.A=A; s.nmat=nmat; s.wb=20480 if nmat==2 else 12288
    def LW(s,buf): return s.LWB+buf*s.wb
    def setup(s, pitches):
        A=s.A
        A(f'''
        v_lshrrev_b32 v14, 3, v0
        v_mul_u32_u24 v14, 1280, v14
        v_and_b32 v15, 7, v0
        v_lshrrev_b32 v16, 4, v0
        v_xor_b32 v17, v15, v16
        v_lshl_add_u32 v{s.vXd}, v17, 4, v14
        v_xor_b32 v17, 4, v17
        v_lshl_add_u32 v{s.vXd+1}, v17, 4, v14
        s_lshl_b32 s41, s{sW}, 12
        v_and_b32 v14, 15, v0
        v_lshlrev_b32 v15, 7, v14
        v_add_u32 v15, s41, v15
        v_lshrrev_b32 v16, 1, v14
        v_lshrrev_b32 v17, 4, v0             ; g
        v_xor_b32 v16, v16, v17
        v_lshl_add_u32 v{s.vXr}, v16, 4, v15
        v_xor_b32 v16, 4, v16
        v_lshl_add_u32 v{s.vXr+1}, v16, 4, v15
        v_bfe_u32 v14, v0, 2, 2
        v_lshl_add_u32 v14, v17, 3, v14
        v_mul_u32_u24 v14, 160, v14
        v_and_b32 v15, 3, v0
        v_mul_u32_u24 v15, 40, v15
        v_add_u32 v14, v14, v15
        v_add_u32 v{s.vWr}, {s.LWB}, v14
        ''')
        per=s.nmat*10//4 if s.nmat==2 else 3
        s.per=per
        if s.nmat==2:
            A(f's_and_b32 s42, s{sW}, 1'); A('s_mul_i32 s42, s42, 5')
            A(f's_lshr_b32 s43, s{sW}, 1')
            A(f's_mul_i32 s43, s43, {pitches[1]-pitches[0]}'); A(f's_add_u32 s43, s43, {pitches[0]}')
        else:
            A(f's_mul_i32 s42, s{sW}, 3'); A(f's_mov_b32 s43, {pitches[0]}')
        for j in range(per):
            A(f'''
            s_add_u32 s44, s42, {j}
            s_lshl_b32 s44, s44, 6
            v_add_u32 v14, s44, v0
            v_mul_u32_u24 v15, 6554, v14
            v_lshrrev_b32 v15, 16, v15
            v_mul_u32_u24 v16, 10, v15
            v_sub_u32 v16, v14, v16             ; c
            v_mul_lo_u32 v15, v15, s43
            v_lshl_add_u32 v{s.vWd+j}, v16, 4, v15
            ''')
        A(f's_mul_i32 s45, s{sW}, {4*8*1280}')
        for j in range(4): A(f's_add_u32 s{46+j}, s45, {j*8*1280}')
        A(f's_lshl_b32 s50, s{sW}, 12')
        if s.nmat==2:
            A(f's_lshr_b32 s51, s{sW}, 1'); A('s_mul_i32 s51, s51, 10240'); A('s_lshl_b32 s44, s42, 10'); A('s_add_u32 s51, s51, s44')
        else:
            A('s_lshl_b32 s51, s42, 10')
    def dma(s,buf,sX,sWt,wsrd):
        out=[]
        for j in range(4):
            out.append([f's_add_u32 s44, s{sX}, s{46+j}', f's_add_u32 m0, s50, {s.LX[buf]+j*1024}', f'buffer_load_dwordx4 v{s.vXd+(j&1)}, s[{S_A}:{S_A+3}], s44 offen lds'])
        for j in range(s.per):
            out.append([f's_add_u32 m0, s51, {s.LW(buf)+j*1024}', f'buffer_load_dwordx4 v{s.vWd+j}, s[{wsrd}:{wsrd+3}], s{sWt} offen lds'])
        return out
    def compute(s,buf,fill,first):
        A=s.A; nt=5*s.nmat
        for ks in range(2):
            st=ks
            for mt in range(2):
                d=s.FX+st*8+mt*4
                A.lds(f'ds_read_b128 v[{d}:{d+3}], v{s.vXr+ks} offset:{s.LX[buf]+mt*2048}',('X',ks))
        items=[(ks,t) for ks in range(2) for t in range(nt)]
        def rd(k):
            ks,t=items[k]; m,T=divmod(t,5); d=s.FW+(k%4)*4
            for jh in range(2):
                A.lds(f'ds_read_b64_tr_b16 v[{d+2*jh}:{d+2*jh+1}], v{s.vWr} offset:{s.LW(buf)-s.LWB+m*10240+(32*ks+4*jh)*160+8*T}',('W',k))
        for k in range(3): rd(k)
        for k,(ks,t) in enumerate(items):
            if k+3<len(items): rd(k+3)
            A.wl(('X',ks)); A.wl(('W',k))
            for mt in range(2):
                acc=s.ACC+(mt*nt+t)*4
                c='0' if (first and ks==0) else f'v[{acc}:{acc+3}]'
                A(f'v_mfma_f32_16x16x32_bf16 v[{acc}:{acc+3}], v[{s.FW+(k%4)*4}:{s.FW+(k%4)*4+3}], v[{s.FX+ks*8+mt*4}:{s.FX+ks*8+mt*4+3}], {c}')
            if fill and k%2==1:
                for x in fill.pop(0): A(x)
        while fill:
            for x in fill.pop(0): A(x)

def softmax20(A, x, out, tmp, neg):
    m,l,t=tmp
    op='v_min3_f32' if neg else 'v_max3_f32'
    A(f'{op} v{m}, v{x[0]}, v{x[1]}, v{x[2]}')
    A(f'{op} v{t}, v{x[3]}, v{x[4]}, v{x[5]}')
    for i in range(6,20,4):
        A(f'{op} v{m}, v{m}, v{x[i]}, v{x[i+1]}')
        if i+3<20: A(f'{op} v{t}, v{t}, v{x[i+2]}, v{x[i+3]}')
    A(f'{"v_min_f32" if neg else "v_max_f32"} v{m}, v{m}, v{t}')
    A(f'v_mul_f32 v{m}, s60, v{m}')
    for i in range(20):
        if neg: A(f'v_fma_f32 v{out[i]}, -v{x[i]}, s60, v{m}')
        else: A(f'v_fma_f32 v{out[i]}, v{x[i]}, s60, -v{m}')
    for i in range(20): A(f'v_exp_f32 v{out[i]}, v{out[i]}')
    A('s_nop 0')
    A(f'v_add_f32 v{l}, v{out[0]}, v{out[1]}')
    A(f'v_add_f32 v{t}, v{out[2]}, v{out[3]}')
    for i in range(4,20,2):
        A(f'v_add_f32 v{l}, v{l}, v{out[i]}'); A(f'v_add_f32 v{t}, v{t}, v{out[i+1]}')
    A(f'v_add_f32 v{l}, v{l}, v{t}')
    A(f'v_rcp_f32 v{l}, v{l}')
    A('s_nop 0')
    for i in range(20): A(f'v_mul_f32 v{out[i]}, v{out[i]}, v{l}')

def gemm_loop(A,g,wsrd,wadv):
    def adv(): return [[f's_add_u32 s30, s30, 128', f's_add_u32 s31, s31, s{wadv}']]
    n=4+g.per
    for k in range(2):
        for grp in g.dma(k,30,31,wsrd):
            for x in grp: A(x)
        for x in adv()[0]: A(x)
    for k in range(10):
        A(f's_waitcnt vmcnt({n if k<9 else 0})')
        A('s_barrier')
        fill=[]
        if k+2<10: fill=g.dma((k+2)%3,30,31,wsrd)+adv()
        A.lq=[]
        g.compute(k%3,fill,k==0)

def job_a1(A, name='JA1', endlabel='L_end'):
    g=G16(A,2)
    A(f'{name}:')
    A(f'''
    s_lshr_b32 s24, s{sJ}, 3
    s_and_b32 s25, s{sJ}, 7
    s_mov_b32 s60, 0x3fb8aa3b
    ''')
    srd(A,S_A,P_X,P_X+1,2048*640*2)
    A(f'''
    s_mul_i32 s26, s25, 160
    s_cmp_lt_u32 s{sW}, 2
    s_cbranch_scc0 {name}_wv
    s_add_u32 s28, s4, {WC_OFF}
    s_addc_u32 s29, s5, 0
    s_mov_b32 s{S_W}, s28
    s_and_b32 s{S_W+1}, s29, 0xffff
    s_mov_b32 s{S_W+2}, {640*2560}
    s_mov_b32 s{S_W+3}, 0x20000
    s_add_u32 s31, s26, 1280
    s_mov_b32 s61, {64*2560}
    s_branch {name}_wd
    {name}_wv:
    s_mov_b32 s{S_W}, s{P_WQKV}
    s_and_b32 s{S_W+1}, s{P_WQKV+1}, 0xffff
    s_mov_b32 s{S_W+2}, {640*3840}
    s_mov_b32 s{S_W+3}, 0x20000
    s_add_u32 s31, s26, 2560
    s_mov_b32 s61, {64*3840}
    {name}_wd:
    ''')
    g.setup([2560,3840])
    A(f's_mul_i32 s30, s24, {128*1280}')
    gemm_loop(A,g,S_W,61)
    A('s_nop 7')
    A('s_barrier')
    PHI=0; VV=49152
    A(f'''
    v_and_b32 v14, 15, v0
    v_lshrrev_b32 v15, 4, v0
    s_lshl_b32 s26, s{sW}, 5
    v_add_u32 v14, s26, v14
    v_mul_u32_u24 v16, 384, v14
    v_mul_u32_u24 v17, 96, v15
    v_add_u32 v2, v16, v17
    v_lshlrev_b32 v16, 8, v14
    v_lshl_add_u32 v3, v15, 6, v16         ; v addr
    v_mov_b32 v4, 0x3f80                   ; (1.0, 0)
    ''')
    for mt in range(2):
        pk=[g.ACC+(mt*10+T)*4+r for T in range(5) for r in range(4)]
        vv=[g.ACC+(mt*10+5+T)*4+r for T in range(5) for r in range(4)]
        E=list(range(20,40))
        for neg in (False,True):
            softmax20(A,pk,E,(5,6,7),neg)
            for i in range(10): A(f'v_cvt_pk_bf16_f32 v{40+i}, v{E[2*i]}, v{E[2*i+1]}')
            for i in range(5): A(f'ds_write_b64 v2, v[{40+2*i}:{41+2*i}] offset:{PHI+mt*16*384+(40 if neg else 0)+8*i}')
        for i in range(10): A(f'v_cvt_pk_bf16_f32 v{50+i}, v{vv[2*i]}, v{vv[2*i+1]}')
        for i in range(5): A(f'ds_write_b64 v3, v[{50+2*i}:{51+2*i}] offset:{VV+mt*16*256+8*i}')
        A(f'ds_write_b32 v3, v4 offset:{VV+mt*16*256+40}')
    A('s_waitcnt lgkmcnt(0)')
    A('s_barrier')
    A(f'''
    v_lshrrev_b32 v14, 4, v0
    v_bfe_u32 v15, v0, 2, 2
    v_lshl_add_u32 v14, v14, 3, v15        ; 8g + r
    v_and_b32 v15, 3, v0
    v_mul_u32_u24 v16, 384, v14
    s_mul_i32 s26, s{sW}, 96
    v_lshl_add_u32 v16, v15, 3, v16
    v_add_u32 v5, s26, v16
    v_lshlrev_b32 v16, 8, v14
    s_lshl_b32 s26, s{sW}, 6
    v_lshl_add_u32 v16, v15, 3, v16
    v_add_u32 v6, s26, v16
    v_add_u32 v6, {VV}, v6
    ''')
    KA=64
    for ks in range(4):
        for ft in range(3):
            for jh in range(2): A(f'ds_read_b64_tr_b16 v[{20+4*ft+2*jh}:{21+4*ft+2*jh}], v5 offset:{(32*ks+4*jh)*384+32*ft}')
        for dt in range(2):
            for jh in range(2): A(f'ds_read_b64_tr_b16 v[{32+4*dt+2*jh}:{33+4*dt+2*jh}], v6 offset:{(32*ks+4*jh)*256+32*dt}')
        A('s_waitcnt lgkmcnt(0)')
        for ft in range(3):
            for dt in range(2):
                acc=KA+(ft*2+dt)*4
                c='0' if ks==0 else f'v[{acc}:{acc+3}]'
                A(f'v_mfma_f32_16x16x32_bf16 v[{acc}:{acc+3}], v[{20+4*ft}:{23+4*ft}], v[{32+4*dt}:{35+4*dt}], {c}')
    A('s_nop 7')
    A(f'''
    s_lshl_b32 s26, s24, 5
    s_lshl_b32 s27, s25, 2
    s_add_u32 s26, s26, s27
    s_add_u32 s26, s26, s{sW}
    s_mul_i32 s26, s26, 6144
    s_add_u32 s26, s26, {KVP_OFF}
    v_lshrrev_b32 v14, 4, v0
    v_lshlrev_b32 v14, 9, v14              ; 4g*128
    v_and_b32 v15, 15, v0
    v_lshl_add_u32 v14, v15, 2, v14
    ''')
    for ft in range(3):
        for dt in range(2):
            for r in range(4):
                o=ft*2048+r*128+dt*64
                if o>=4096:
                    A(f's_add_u32 s27, s26, 4096'); A(f'buffer_store_dword v{KA+(ft*2+dt)*4+r}, v14, s[{S_WS}:{S_WS+3}], s27 offen offset:{o-4096}')
                else: A(f'buffer_store_dword v{KA+(ft*2+dt)*4+r}, v14, s[{S_WS}:{S_WS+3}], s26 offen offset:{o}')
    A(f's_branch {endlabel}')

def job_kvred(A, name='JKVR', endlabel='L_end'):
    A(f'{name}:')
    A(f'''
    s_lshl_b32 s26, s{sW}, 6
    v_add_u32 v1, s26, v0
    v_mul_u32_u24 v2, 10923, v1
    v_lshrrev_b32 v2, 16, v2               ; f = t/6
    v_mul_u32_u24 v3, 6, v2
    v_sub_u32 v3, v1, v3                   ; dq
    v_lshlrev_b32 v4, 7, v2
    v_lshl_add_u32 v4, v3, 4, v4           ; f*128 + dq*16
    s_mul_i32 s27, s{sJ}, 6144
    s_add_u32 s27, s27, {KVP_OFF}
    v_cmp_gt_u32 vcc, 240, v1
    s_and_saveexec_b64 s[28:29], vcc
    s_cbranch_execz {name}_done
    ''')
    for tb in range(16):
        A(f'buffer_load_dwordx4 v[{10+4*tb}:{13+4*tb}], v4, s[{S_WS}:{S_WS+3}], s27 offen')
        A(f's_add_u32 s27, s27, {32*6144}')
    A('s_waitcnt vmcnt(0)')
    for tb in range(1,16):
        for r in range(4): A(f'v_add_f32 v{10+r}, v{10+r}, v{10+4*tb+r}')
    A(f'''
    v_cvt_pk_bf16_f32 v10, v10, v11
    v_cvt_pk_bf16_f32 v11, v12, v13
    v_mul_u32_u24 v5, 320, v3
    v_lshl_add_u32 v5, v2, 1, v5
    s_lshl_b32 s27, s{sJ}, 11
    s_add_u32 s27, s27, {KVF_OFF}
    buffer_store_short v10, v5, s[{S_WS}:{S_WS+3}], s27 offen
    buffer_store_short_d16_hi v10, v5, s[{S_WS}:{S_WS+3}], s27 offen offset:80
    buffer_store_short v11, v5, s[{S_WS}:{S_WS+3}], s27 offen offset:160
    buffer_store_short_d16_hi v11, v5, s[{S_WS}:{S_WS+3}], s27 offen offset:240
    {name}_done:
    s_mov_b64 exec, s[28:29]
    s_branch {endlabel}
    ''')

def job_a2(A, name='JA2', endlabel='L_end'):
    g=G16(A,1)
    A(f'{name}:')
    A(f'''
    s_lshr_b32 s24, s{sJ}, 3
    s_and_b32 s25, s{sJ}, 7
    s_mov_b32 s60, 0x3fb8aa3b
    s_add_u32 s28, s4, {WC_OFF}
    s_addc_u32 s29, s5, 0
    s_mov_b32 s{S_W}, s28
    s_and_b32 s{S_W+1}, s29, 0xffff
    s_mov_b32 s{S_W+2}, {640*2560}
    s_mov_b32 s{S_W+3}, 0x20000
    s_mul_i32 s31, s25, 160
    s_mov_b32 s61, {64*2560}
    ''')
    srd(A,S_A,P_X,P_X+1,2048*640*2)
    g.setup([2560])
    A(f's_mul_i32 s30, s24, {128*1280}')
    gemm_loop(A,g,S_W,61)
    A('s_nop 7')
    A(f'''
    v_lshrrev_b32 v14, 4, v0               ; g
    v_bfe_u32 v15, v0, 2, 2                ; i>>2
    v_cmp_eq_u32 vcc, v14, v15
    s_nop 4
    s_mov_b64 s[62:63], vcc
    v_and_b32 v16, 3, v0
    v_mul_u32_u24 v16, 80, v16
    v_lshl_add_u32 v2, v14, 11, v16
    s_lshl_b32 s26, s25, 13
    s_add_u32 s26, s26, {KVF_OFF}
    v_and_b32 v15, 15, v0
    s_lshl_b32 s27, s24, 7
    s_lshl_b32 s28, s{sW}, 5
    s_add_u32 s27, s27, s28
    v_add_u32 v15, s27, v15
    v_lshlrev_b32 v3, 2, v15
    s_mov_b32 s28, {G_OFF}
    buffer_load_dword v8, v3, s[{S_WS}:{S_WS+3}], s28 offen
    buffer_load_dword v9, v3, s[{S_WS}:{S_WS+3}], s28 offen offset:64
    s_mov_b32 s29, {OM_PITCH}
    v_mul_lo_u32 v4, v15, s29
    v_mul_u32_u24 v16, 40, v14
    v_add_u32 v4, v4, v16
    s_mul_i32 s29, s25, 160
    s_add_u32 s29, s29, {OM_OFF}
    ''')
    PB=104
    for mt in range(2):
        pq=[g.ACC+(mt*5+T)*4+r for T in range(5) for r in range(4)]
        E=list(range(20,40))
        for neg in (False,True):
            softmax20(A,pq,E,(5,6,7),neg)
            for i in range(10): A(f'v_cvt_pk_bf16_f32 v{PB+mt*20+(10 if neg else 0)+i}, v{E[2*i]}, v{E[2*i+1]}')
    NA=144
    KF=20
    for Tp in range(6):
        for sidx in range(5):
            for r in range(4): A(f'v_mov_b32 v{KF+4*sidx+r}, 0')
        A('s_mov_b64 exec, s[62:63]')
        for sidx in range(5):
            A(f'buffer_load_dwordx4 v[{KF+4*sidx}:{KF+4*sidx+3}], v2, s[{S_WS}:{S_WS+3}], s26 offen offset:{Tp*320+16*sidx}')
        A('s_mov_b64 exec, -1')
        A('s_waitcnt vmcnt(0)')
        for mt in range(2):
            acc=NA+mt*24+Tp*4
            for sidx in range(5):
                c='0' if sidx==0 else f'v[{acc}:{acc+3}]'
                A(f'v_mfma_f32_16x16x32_bf16 v[{acc}:{acc+3}], v[{KF+4*sidx}:{KF+4*sidx+3}], v[{PB+mt*20+4*sidx}:{PB+mt*20+4*sidx+3}], {c}')
        A('s_nop 3')
    A('s_nop 7')
    for mt in range(2):
        den=NA+mt*24+20
        A(f'v_add_f32 v5, 0x358637bd, v{den}')
        A('v_rcp_f32 v5, v5')
        A('s_nop 0')
        A(f'v_mul_f32 v5, v5, v{8+mt}')
        for i in range(20): A(f'v_mul_f32 v{NA+mt*24+i}, v{NA+mt*24+i}, v5')
        for i in range(10): A(f'v_cvt_pk_bf16_f32 v{40+i}, v{NA+mt*24+2*i}, v{NA+mt*24+2*i+1}')
        if mt==1: A(f's_add_u32 s29, s29, {16*OM_PITCH}')
        for i in range(5): A(f'buffer_store_dwordx2 v[{40+2*i}:{41+2*i}], v4, s[{S_WS}:{S_WS+3}], s29 offen offset:{8*i}')
        A('s_nop 1')
    A(f's_branch {endlabel}')
```

```python
from asmlib import *
from layout import *
from gemm import *

def job_c(A, name='JC', endlabel='L_end'):
    A(f'{name}:')
    A(f'''
    s_lshl_b32 s24, s{sJ}, 2
    s_add_u32 s24, s24, s{sW}            ; task
    s_lshr_b32 s25, s24, 5               ; seg
    s_and_b32 s26, s24, 31               ; head
    s_lshl_b32 s27, s24, 13              ; task*8192
    s_lshl_b32 s28, s24, 11              ; task*2048
    s_add_u32 s29, s27, {QX_OFF}
    s_add_u32 s30, s27, {KX_OFF}
    s_add_u32 s31, s27, {VX_OFF}
    s_add_u32 s32, s28, {KM_OFF}
    s_add_u32 s33, s28, {VM_OFF}
    v_lshlrev_b32 v1, 4, v0              ; lane*16
    v_lshrrev_b32 v2, 4, v0              ; g
    v_and_b32 v3, 15, v0                 ; n / i
    ''')
    WSd=f's[{S_WS}:{S_WS+3}]'
    QF=16
    KF=48
    KM=80
    VF=96
    VM=128
    def big(off): return off
    for U in range(2):
        A(f's_add_u32 s34, s29, {U*4096}')
        for ks in range(4): A(f'buffer_load_dwordx4 v[{QF+(U*4+ks)*4}:{QF+(U*4+ks)*4+3}], v1, {WSd}, s34 offen offset:{ks*1024}')
    for T in range(2):
        A(f's_add_u32 s34, s30, {T*4096}')
        for ks in range(4): A(f'buffer_load_dwordx4 v[{KF+(T*4+ks)*4}:{KF+(T*4+ks)*4+3}], v1, {WSd}, s34 offen offset:{ks*1024}')
    A(f'''
    v_and_b32 v4, 7, v3
    v_lshlrev_b32 v4, 8, v4
    v_lshl_add_u32 v4, v2, 4, v4
    ''')
    for ks in range(4): A(f'buffer_load_dwordx4 v[{KM+ks*4}:{KM+ks*4+3}], v4, {WSd}, s32 offen offset:{ks*64}')
    for h in range(2):
        A(f's_add_u32 s34, s31, {h*4096}')
        for t in range(4): A(f'buffer_load_dwordx4 v[{VF+(h*4+t)*4}:{VF+(h*4+t)*4+3}], v1, {WSd}, s34 offen offset:{t*1024}')
    for r in range(VM,VM+32,2): A(f'v_mov_b64 v[{r}:{r+1}], 0')
    A(f'''
    v_lshlrev_b32 v5, 4, v3
    v_lshl_add_u32 v5, v2, 3, v5
    s_mov_b32 exec_hi, 0
    ''')
    for t in range(8): A(f'buffer_load_dwordx2 v[{VM+t*4}:{VM+t*4+1}], v5, {WSd}, s33 offen offset:{t*256}')
    A('s_mov_b64 exec, -1')
    A(f'''
    v_lshrrev_b32 v6, 1, v2
    v_lshlrev_b32 v6, 4, v6
    v_and_b32 v7, 1, v2
    v_lshl_add_u32 v6, v7, 2, v6
    v_lshrrev_b32 v7, 3, v3
    v_lshlrev_b32 v7, 4, v7
    v_bfe_u32 v8, v3, 2, 1
    v_lshl_add_u32 v7, v8, 2, v7
    v_and_b32 v8, 3, v3
    v_add_u32 v7, v7, v8
    v_sub_u32 v8, v7, v6
    s_lshl_b32 s34, s25, 5
    v_add_u32 v9, s34, v7
    v_lshlrev_b32 v10, 2, v9
    s_mov_b32 s35, {G_OFF}
    buffer_load_dword v11, v10, {WSd}, s35 offen
    buffer_load_dword v12, v10, {WSd}, s35 offen offset:32
    s_mov_b32 s60, 0x3e0293ee
    s_mov_b32 s61, 0xff800000             ; -inf
    s_waitcnt vmcnt(0)
    ''')
    S=160
    for U in range(2):
        for T in range(3):
            acc=S+(U*3+T)*4
            for ks in range(4):
                a=(KF+(T*4+ks)*4) if T<2 else KM+ks*4
                c='0' if ks==0 else f'v[{acc}:{acc+3}]'
                A(f'v_mfma_f32_16x16x32_bf16 v[{acc}:{acc+3}], v[{a}:{a+3}], v[{QF+(U*4+ks)*4}:{QF+(U*4+ks)*4+3}], {c}')
    A('s_nop 7')
    A('v_cmp_gt_u32 s[62:63], 2, v2')
    P=184
    ON=200
    for r in range(4): A(f'v_mov_b32 v{ON+r}, 0x3f803f80')
    for U in range(2):
        sx=[S+(U*3+T)*4+r for T in range(2) for r in range(4)]
        sm=[S+(U*3+2)*4+r for r in range(4)]
        for T in range(2):
            for r in range(4):
                A(f'v_cmp_le_i32 vcc, {8*T+r-8*U}, v8')
                A('s_nop 1') if False else None
                A(f'v_mov_b32 v13, s61')
                A('s_nop 0')
                A(f'v_cndmask_b32 v{sx[T*4+r]}, v13, v{sx[T*4+r]}, vcc')
        for r in range(4):
            A(f'v_mov_b32 v13, s61')
            A(f'v_cndmask_b32_e64 v{sm[r]}, v13, v{sm[r]}, s[62:63]')
        al=sx+sm
        A(f'v_max3_f32 v13, v{al[0]}, v{al[1]}, v{al[2]}')
        A(f'v_max3_f32 v14, v{al[3]}, v{al[4]}, v{al[5]}')
        A(f'v_max3_f32 v13, v13, v{al[6]}, v{al[7]}')
        A(f'v_max3_f32 v14, v14, v{al[8]}, v{al[9]}')
        A(f'v_max3_f32 v13, v13, v{al[10]}, v{al[11]}')
        A('v_max_f32 v13, v13, v14')
        for sw in ('32','16'):
            A('v_mov_b32 v14, v13'); A('s_nop 1'); A(f'v_permlane{sw}_swap_b32 v13, v14'); A('v_max_f32 v13, v13, v14')
        A('v_mul_f32 v13, s60, v13')
        for r in al: A(f'v_fma_f32 v{r}, v{r}, s60, -v13')
        for r in al: A(f'v_exp_f32 v{r}, v{r}')
        A('s_nop 0')
        for i in range(4): A(f'v_cvt_pk_bf16_f32 v{P+U*8+i}, v{sx[2*i]}, v{sx[2*i+1]}')
        for i in range(2): A(f'v_cvt_pk_bf16_f32 v{P+U*8+4+i}, v{sm[2*i]}, v{sm[2*i+1]}')
        A(f'v_mov_b64 v[{P+U*8+6}:{P+U*8+7}], 0')
    O=208
    L=160
    A('s_nop 1')
    for U in range(2):
        acc=L+U*4
        A(f'v_mfma_f32_16x16x32_bf16 v[{acc}:{acc+3}], v[{ON}:{ON+3}], v[{P+U*8}:{P+U*8+3}], 0')
        A(f'v_mfma_f32_16x16x32_bf16 v[{acc}:{acc+3}], v[{ON}:{ON+3}], v[{P+U*8+4}:{P+U*8+7}], v[{acc}:{acc+3}]')
    A(f'''
    s_mov_b32 s34, {OM_PITCH}
    v_mul_lo_u32 v10, v9, s34
    v_lshl_add_u32 v10, v2, 4, v10
    s_lshl_b32 s35, s26, 8
    s_add_u32 s35, s35, {OM_OFF+1280}
    ''')
    for U in range(2):
        OA=16 if U==0 else 208
        for t in range(8):
            acc=OA+t*4
            A(f'v_mfma_f32_16x16x32_bf16 v[{acc}:{acc+3}], v[{VF+t*4}:{VF+t*4+3}], v[{P+U*8}:{P+U*8+3}], 0')
        for t in range(8):
            acc=OA+t*4
            A(f'v_mfma_f32_16x16x32_bf16 v[{acc}:{acc+3}], v[{VM+t*4}:{VM+t*4+3}], v[{P+U*8+4}:{P+U*8+7}], v[{acc}:{acc+3}]')
    A('s_nop 7')
    for U in range(2):
        OA=16 if U==0 else 208
        A(f'v_rcp_f32 v13, v{L+U*4}')
        A(f'v_sub_f32 v14, 1.0, v{11+U}')
        A(f'v_mul_f32 v13, v13, v14')
        for r in range(32): A(f'v_mul_f32 v{OA+r}, v{OA+r}, v13')
        if U==1: A(f's_add_u32 s35, s35, {8*OM_PITCH}')
        for a in range(4):
            d=48+a*4
            A(f'v_cvt_pk_bf16_f32 v{d}, v{OA+8*a}, v{OA+8*a+1}')
            A(f'v_cvt_pk_bf16_f32 v{d+1}, v{OA+8*a+2}, v{OA+8*a+3}')
            A(f'v_cvt_pk_bf16_f32 v{d+2}, v{OA+8*a+4}, v{OA+8*a+5}')
            A(f'v_cvt_pk_bf16_f32 v{d+3}, v{OA+8*a+6}, v{OA+8*a+7}')
            A(f'buffer_store_dwordx4 v[{d}:{d+3}], v10, {WSd}, s35 offen offset:{a*64}')
        A('s_nop 1')
    A(f's_branch {endlabel}')

class GO:
    LW=[0,16384,32768]; LA=[49152,57344,65536]
    vAd=2; vWd=4; vWd2=6; vAr=8; vBr=12; FA=16; FB=24; ACC=64
    def __init__(s,A): s.A=A
    def setup(s):
        A=s.A
        A(f'''
        v_lshrrev_b32 v40, 3, v0
        s_mov_b32 s40, {OM_PITCH}
        v_mul_lo_u32 v40, v40, s40
        v_and_b32 v41, 7, v0
        v_lshrrev_b32 v42, 4, v0
        v_xor_b32 v43, v41, v42
        v_lshl_add_u32 v{s.vAd}, v43, 4, v40
        v_xor_b32 v43, 4, v43
        v_lshl_add_u32 v{s.vAd+1}, v43, 4, v40
        v_lshrrev_b32 v40, 4, v0             ; row&3
        v_and_b32 v41, 15, v0
        v_lshlrev_b32 v42, 2, v40
        v_xor_b32 v43, v41, v42
        v_mul_u32_u24 v44, 1280, v40
        v_lshl_add_u32 v{s.vWd}, v43, 4, v44
        s_and_b32 s41, s{sW}, 1
        s_lshl_b32 s41, s41, 12              ; 32 rows*128
        s_add_u32 s41, s41, {s.LA[0]}
        v_and_b32 v40, 31, v0
        v_lshlrev_b32 v41, 7, v40
        v_add_u32 v41, s41, v41
        v_lshrrev_b32 v42, 1, v40
        v_and_b32 v42, 7, v42
        v_lshrrev_b32 v43, 5, v0
        v_xor_b32 v42, v42, v43
        ''')
        for ks in range(4):
            A(f'v_xor_b32 v43, {2*ks}, v42'); A(f'v_lshl_add_u32 v{s.vAr+ks}, v43, 4, v41')
        A(f'''
        v_bfe_u32 v40, v0, 2, 2              ; r
        v_lshrrev_b32 v41, 5, v0
        v_lshlrev_b32 v41, 3, v41
        v_add_u32 v41, v41, v40
        v_lshlrev_b32 v41, 8, v41            ; *256
        v_bfe_u32 v42, v0, 4, 1
        v_lshl_add_u32 v41, v42, 5, v41
        v_and_b32 v42, 3, v0
        v_lshl_add_u32 v41, v42, 3, v41
        s_lshr_b32 s41, s{sW}, 1
        s_lshl_b32 s41, s41, 1               ; 2wn
        ''')
        for nt in range(2):
            A(f's_add_u32 s42, s41, {nt}'); A(f'v_xor_b32 v42, s42, v40'); A(f'v_lshl_add_u32 v{s.vBr+nt}, v42, 6, v41')
        A(f's_mul_i32 s45, s{sW}, {16*OM_PITCH}')
        A(f's_mov_b32 s46, s45'); A(f's_add_u32 s47, s45, {8*OM_PITCH}')
        A(f's_lshl_b32 s50, s{sW}, 11'); A(f's_lshl_b32 s51, s{sW}, 12')
        for j in range(4):
            A(f's_mul_i32 s{52+j}, s{sW}, {16*1280}'); A(f's_add_u32 s{52+j}, s{52+j}, {4*j*1280}')
            A(f's_lshr_b32 s44, s{sW}, 1'); A('s_lshl_b32 s44, s44, 5')
            A(f's_and_b32 s43, s{sW}, 1'); A('s_lshl_b32 s43, s43, 3')
            A('s_add_u32 s44, s44, s43'); A(f's_add_u32 s44, s44, {16*(j&1)+4*(j>>1)}')
            A(f's_mul_i32 s{56+j}, s44, 1280')
    def dma(s,buf,partB):
        out=[]
        for j in range(2):
            out.append([f's_add_u32 s44, s30, s{46+j}', f's_add_u32 m0, s50, {s.LA[buf]+j*1024}', f'buffer_load_dwordx4 v{s.vAd+j}, s[{S_WS}:{S_WS+3}], s44 offen lds'])
        for j in range(4):
            out.append([f's_add_u32 s44, s31, s{(56 if partB else 52)+j}', f's_add_u32 m0, s51, {s.LW[buf]+j*1024}', f'buffer_load_dwordx4 v{s.vWd}, s[{S_W}:{S_W+3}], s44 offen lds'])
        return out
    def compute(s,buf,fill,first):
        A=s.A
        def rd(ks,st):
            d=s.FA+st*4
            A.lds(f'ds_read_b128 v[{d}:{d+3}], v{s.vAr+ks} offset:{s.LA[buf]-s.LA[0]}',('A',ks))
            for nt in range(2):
                d=s.FB+st*8+nt*4
                for jh in range(2):
                    A.lds(f'ds_read_b64_tr_b16 v[{d+2*jh}:{d+2*jh+1}], v{s.vBr+nt} offset:{s.LW[buf]+(16*ks+4*jh)*256}',('A',ks))
        rd(0,0)
        for ks in range(4):
            st=ks&1
            if ks<3: rd(ks+1,st^1)
            A.wl(('A',ks))
            for nt in range(2):
                acc=s.ACC+nt*16
                c='0' if (first and ks==0) else f'v[{acc}:{acc+15}]'
                A(f'v_mfma_f32_32x32x16_bf16 v[{acc}:{acc+15}], v[{s.FA+st*4}:{s.FA+st*4+3}], v[{s.FB+st*8+nt*4}:{s.FB+st*8+nt*4+3}], {c}')
                if fill:
                    for x in fill.pop(0): A(x)
        while fill:
            for x in fill.pop(0): A(x)

def job_o(A, name='JO', endlabel='L_end'):
    g=GO(A)
    A(f'{name}:')
    A(f'''
    s_mul_i32 s24, s{sJ}, 13108
    s_lshr_b32 s24, s24, 16              ; mb
    s_mul_i32 s25, s24, 5
    s_sub_u32 s25, s{sJ}, s25            ; nb
    ''')
    g.setup()
    A(f'''
    s_mul_i32 s30, s24, {64*OM_PITCH}
    s_add_u32 s30, s30, {OM_OFF}
    s_lshl_b32 s31, s25, 8
    s_mov_b32 s62, s31
    ''')
    srd(A,S_W,P_WO_A,P_WO_A+1,640*640*2)
    NI=74
    def adv(k):
        if k==9:
            return [[f's_add_u32 s30, s30, 128', f's_mov_b32 s31, s62', f's_mov_b32 s{S_W}, s{P_WO}', f's_and_b32 s{S_W+1}, s{P_WO+1}, 0xffff', f's_mov_b32 s{S_W+2}, {4096*640*2}']]
        return [[f's_add_u32 s30, s30, 128', f's_add_u32 s31, s31, {64*1280}']]
    for k in range(2):
        for grp in g.dma(k,False):
            for x in grp: A(x)
        for x in adv(k)[0]: A(x)
    def it(k,dma_k,first=False):
        A(f's_waitcnt vmcnt({6 if dma_k is not None or k==NI-2 else 0})')
        A('s_barrier')
        fill=[]
        if dma_k is not None: fill=g.dma(dma_k%3,dma_k>=10)+adv(dma_k)
        A.lq=[]
        g.compute(k%3,fill,first)
    for k in range(12): it(k,k+2,first=(k==0))
    A('s_mov_b32 s63, 20')
    A(f'{name}_loop:')
    for k in range(12,15): it(k,k+2)
    A('s_sub_u32 s63, s63, 1'); A('s_cmp_lg_u32 s63, 0'); A(f's_cbranch_scc1 {name}_loop')
    it(72,None); it(73,None)
    A('s_nop 15'); A('s_nop 3')
    srd(A,S_A,P_OUT,P_OUT+1,2048*640*2)
    A(f'''
    v_lshrrev_b32 v40, 5, v0
    v_and_b32 v41, 31, v0
    v_mul_u32_u24 v40, {4*1280}, v40
    v_lshl_add_u32 v40, v41, 1, v40
    s_lshl_b32 s26, s24, 6
    s_and_b32 s27, s{sW}, 1
    s_lshl_b32 s27, s27, 5
    s_add_u32 s26, s26, s27              ; token0
    s_mul_i32 s26, s26, 1280
    s_lshl_b32 s27, s25, 8
    s_add_u32 s26, s26, s27
    s_lshr_b32 s27, s{sW}, 1
    s_lshl_b32 s27, s27, 7
    s_add_u32 s26, s26, s27
    ''')
    for nt in range(2):
        for r in range(0,16,2):
            acc=g.ACC+nt*16+r
            A(f'v_cvt_pk_bf16_f32 v44, v{acc}, v{acc+1}')
            row0=8*(r>>2)+(r&3)
            A(f's_add_u32 s27, s26, {row0*1280+nt*64}')
            A(f'buffer_store_short v44, v40, s[{S_A}:{S_A+3}], s27 offen')
            A(f'buffer_store_short_d16_hi v44, v40, s[{S_A}:{S_A+3}], s27 offen offset:1280')
            A('s_nop 0')
    A(f's_branch {endlabel}')
```

```python
KX_OFF   = 0x0000000
VX_OFF   = 0x1000000
QX_OFF   = 0x2000000
KM_OFF   = 0x3000000
VM_OFF   = 0x3400000
PART_OFF = 0x3800000
PART_PAR = 163840
MEM_OFF  = 0x3900000
MEM_X    = 30720
STAMP_OFF= 0x3A00000
DBGM_OFF = 0x3B00000
OM_OFF   = 0x4000000
OM_PITCH = 9472
WC_OFF   = 0x6000000
G_OFF    = 0x6200000
KVP_OFF  = 0x6300000
WS_BYTES = 268435456
KN='gated_mix__linear_kernel_hedgehog__memory_aug_recurrent_mem_tr__prompt_kernel'
KVF_OFF  = 0x6700000
```

```python
import sys; sys.path.insert(0,'gen')
from asmlib import *
from layout import *
import gemm, jobs_a, jobs_c, chain6
HDR=open('gated_mix__linear_kernel_hedgehog__memory_aug_recurrent_mem_tr__prompt.s.ref').read().split('; Override launch geometry')[0] if __import__('os').path.exists('gated_mix__linear_kernel_hedgehog__memory_aug_recurrent_mem_tr__prompt.s.ref') else ''
def simple_kernel(name, parts, vgpr=256):
    B=Sched()
    B.raw(kernel_header(name))
    total=sum(p[0] for p in parts)
    B(f's_cmp_ge_u32 s2, {total}'); B(f's_cbranch_scc1 L_end_{name}')
    B(f's_mov_b32 s{gemm.sJ}, s2')
    gemm.common_prologue(B)
    base=0
    for i,(cnt,fn,lab) in enumerate(parts):
        if i<len(parts)-1:
            B(f's_cmp_lt_u32 s{gemm.sJ}, {cnt}'); B(f's_cbranch_scc1 {lab}')
            B(f's_sub_u32 s{gemm.sJ}, s{gemm.sJ}, {cnt}')
        else:
            B(f's_branch {lab}')
    for cnt,fn,lab in parts:
        B.lq=[]; B.vq=[]
        fn(B,name=lab,endlabel=f'L_end_{name}')
    B(f'L_end_{name}:'); B('s_endpgm')
    B.raw(kernel_desc(name,vgpr=vgpr,accum=256))
    return B.text(), total
def gen():
    ks=[]
    t,n=simple_kernel('pre_kernel',[(768,gemm.job_proj,'JP'),(64,jobs_a.job_prep,'JPREP')]); ks.append(('pre_kernel',n,147456,t))
    t,n=simple_kernel('a1_kernel',[(128,jobs_a.job_a1,'JA1')]); ks.append(('a1_kernel',n,147456,t))
    t=chain6.gen(name='chain_kernel',standalone=False); ks.append(('chain_kernel',256,163840,t))
    t,n=simple_kernel('kvr_kernel',[(32,jobs_a.job_kvred,'JKVR')]); ks.append(('kvr_kernel',n,0,t))
    t,n=simple_kernel('post_kernel',[(128,jobs_a.job_a2,'JA2'),(512,jobs_c.job_c,'JC')]); ks.append(('post_kernel',n,147456,t))
    t,n=simple_kernel('out_kernel',[(160,jobs_c.job_o,'JO')]); ks.append(('out_kernel',n,73728,t))
    out=HDR
    for nm,n,lds,t in ks: out+=f'; @launch kernel={nm} grid=({n},1,1) block=(256,1,1) lds={lds}\n'
    out+='.amdgcn_target "amdgcn-amd-amdhsa--gfx950"\n.text\n'
    for nm,n,lds,t in ks: out+=t
    return out
if __name__=='__main__':
    open(sys.argv[1] if len(sys.argv)>1 else 'v1.s','w').write(gen())
```

```python
from asmlib import *
from layout import *

L_MEMA=0; L_KX=10240; L_QX=18432; L_KM=20736; L_OX=18432; L_W=24576
QP=288
WVW=17*2048

S_WS=8; S_DBG=12; S_TMP=16
sX=20; sP=21; sW=22; sStep=23
sRole=24; sPartW=25; sPartR=26; sPubL=27; sPubR=28; sRstR=29; sMemB=30; sSlot=31; sPar=32
sQ4=33; sKX=34; sVX=35; sKMo=36; sVMo=37; sC=38; sMemCur=39
sT0=40; sT1=41; sT2=42; sT3=43; sT4=44; sT5=45; sT6=46; sT7=47
sE0=48
sFail=50; sCnt=51; sGlob=52; sPfK=53
sEta=2; sLo=6; sC2=60; sQm=4; sWoff=19
vL=0; vL16=1; vIdx=2; vPst4=3; vPst1=4; vPub=5; vQw=6; vQr=7; vSel=8
vKr=12; vOw=13; vWL=14; vT=15; vT2=16; vKV=17; vT3=86; vT4=87
aQ=18; aK=26; aV=34
RA=42; RW=62; QF=62; RVX=78; vU=86; vU2=87

def home(m,t,b):
    if m=='q': return ('a',(t*10+b)*8)
    if m=='k':
        if b>=5: return ('a',160+((b-5)*2+t)*8)
        i=2*b+t
        if i<2: return ('a',240+i*8)
        if i==2: return ('v',88)
        if i==3: return ('lds',32768)
        return ('lds',20480+(i-4)*2048)
    if m=='v':
        if b>=5: return ('v',96+((b-5)*2+t)*8)
        return ('lds',(2*b+t)*2048)
def WO(lt,k2): return ('v',176+(lt*2+k2)*8)
ACC={'q':aQ,'k':aK,'v':aV}
def R(kind,base,n=8): return f'{kind}[{base}:{base+n-1}]'
def smf(A,acc,Areg,W):
    A(f'v_smfmac_f32_16x16x64_bf16 v[{acc}:{acc+3}], v[{Areg}:{Areg+3}], {R(*W)}, v{vIdx}')

def check_sent(A, regs, t0, t1):
    regs=list(regs)
    A(f'v_max3_u32 v{t0}, v{regs[0]}, v{regs[1]}, v{regs[2]}'); regs=regs[3:]
    two=False
    if len(regs)>=3:
        A(f'v_max3_u32 v{t1}, v{regs[0]}, v{regs[1]}, v{regs[2]}'); regs=regs[3:]; two=True
    k=0
    while len(regs)>=2:
        t=t0 if (k%2==0 or not two) else t1
        A(f'v_max3_u32 v{t}, v{t}, v{regs[0]}, v{regs[1]}'); regs=regs[2:]; k+=1
    if regs: A(f'v_max_u32 v{t0}, v{t0}, v{regs[0]}')
    if two: A(f'v_max_u32 v{t0}, v{t0}, v{t1}')
    A(f'v_cmp_eq_u32 vcc, -1, v{t0}')

def srd(A, base, lo, hi, nbytes):
    A(f's_mov_b32 s{base}, s{lo}')
    A(f's_and_b32 s{base+1}, s{hi}, 0xffff')
    A(f's_mov_b32 s{base+2}, {nbytes}')
    A(f's_mov_b32 s{base+3}, 0x20000')

class Cfg:
    stamps=False; stamp_step=40; cyc=False; only=None; nocomm=False; dbg=None; dmaflags='sc1'; puborder=0; nokx=False; norst=False; nopf=False; kxwait=False; blk=False; kvflag=''; norem=False; norstR=False; nopartrst=False; nopf2=False; dmawait=False; novx=False; cut=None; remat=[('q',0,0)]; dW3=100; merged=False
    dP=48
    dL=0
CFG=Cfg()
def stamp(A,tag):
    if CFG.cut==tag:
        A.wl0(); A('s_branch L_cut')
    if not CFG.stamps: return
    if CFG.only is not None and tag not in CFG.only: return
    A.wl0()
    A(f'''
    {'s_memtime' if CFG.cyc else 's_memrealtime'} s[68:69]
    s_waitcnt lgkmcnt(0)
    s_and_b32 s68, s68, 0xffffff
    s_or_b32 s68, s68, {tag<<24}
    s_cmp_lg_u32 s{sStep}, {CFG.stamp_step}
    s_cbranch_scc1 1f
    s_mov_b32 m0, s70
    s_nop 0
    s_movreld_b32 s72, s68
    s_add_u32 s70, s70, 1
    s_min_u32 s70, s70, 29
    1:
    ''')
def dump(A,tag,regs):
    if CFG.dbg!=tag: return
    l=A.newlabel('L_dbg')
    A.wl0()
    A(f'''s_nop 15
    s_cmp_lg_u32 s{sStep}, 0
    s_cbranch_scc1 {l}
    s_lshl_b32 s68, s{sX}, 5
    s_add_u32 s68, s68, s{sP}
    s_lshl_b32 s68, s68, 2
    s_add_u32 s68, s68, s{sW}
    s_lshl_b32 s68, s68, 13
    s_add_u32 s68, s68, {DBGM_OFF}
    v_lshlrev_b32 v87, 2, v{vL}''')
    for k,r in enumerate(regs):
        A(f'buffer_store_dword v{r}, v87, s[{S_WS}:{S_WS+3}], s68 offen offset:{k*256}')
    A('s_waitcnt vmcnt(0)')
    A(f'{l}:')
def nops(A,n):
    while n>0:
        k=min(n,16); A(f's_nop {k-1}'); n-=k

def gen_startup(A, other='L_end'):
    A(f'''
    s_cmp_ge_u32 s2, 256
    s_cbranch_scc1 L_end
    s_load_dwordx2 s[4:5], s[0:1], 112
    s_load_dwordx2 s[6:7], s[0:1], 104
    s_load_dwordx4 s[56:59], s[0:1], 40
    s_load_dwordx4 s[60:63], s[0:1], 56
    s_load_dwordx2 s[64:65], s[0:1], 72      ; Wo
    s_getreg_b32 s{sX}, hwreg(HW_REG_XCC_ID, 0, 4)
    v_lshrrev_b32 v1, 6, v0
    v_and_b32 v{vL}, 63, v0
    s_nop 1
    v_readfirstlane_b32 s{sW}, v1
    s_waitcnt lgkmcnt(0)
    ''')
    srd(A,S_WS,4,5,WS_BYTES)
    srd(A,S_DBG,6,7,256)
    A(f'''
    s_cmp_lg_u32 s{sW}, 0
    s_cbranch_scc1 L_tk_done
    v_mov_b32 v2, 1
    s_lshl_b32 s{sT0}, s{sX}, 2
    v_mov_b32 v3, s{sT0}
    s_mov_b64 exec, 1
    buffer_atomic_add v2, v3, s[{S_DBG}:{S_DBG+3}], 0 offen sc0
    s_waitcnt vmcnt(0)
    v_mov_b32 v4, 0
    ds_write_b32 v4, v2
    s_waitcnt lgkmcnt(0)
    s_mov_b64 exec, -1
    L_tk_done:
    s_barrier
    v_mov_b32 v4, 0
    ds_read_b32 v2, v4
    s_waitcnt lgkmcnt(0)
    v_readfirstlane_b32 s{sP}, v2
    s_barrier
    s_cmp_ge_u32 s{sX}, 2
    s_cbranch_scc1 {other}
    s_cmp_ge_u32 s{sP}, 32
    s_cbranch_scc1 {other}
    s_memtime s[54:55]
    ''')
    if CFG.merged:
        A(f'''
        v_mov_b32 v24, 0
        s_cmp_lg_u32 s{sW}, 0
        s_cbranch_scc1 L_fi_done
        s_lshl_b32 s{sT0}, s{sX}, 5
        s_add_u32 s{sT0}, s{sT0}, s{sP}
        s_lshl_b32 s{sT0}, s{sT0}, 10
        s_add_u32 s{sT0}, s{sT0}, {PROG_OFF}
        v_mov_b32 v25, 0
        v_mov_b32 v26, 0
        v_mov_b32 v27, 0
        v_lshlrev_b32 v20, 4, v{vL}
        buffer_store_dwordx4 v[24:27], v20, s[{S_WS}:{S_WS+3}], s{sT0} offen sc1
        s_or_b32 s{sT0}, s{sX}, s{sP}
        s_cmp_lg_u32 s{sT0}, 0
        s_cbranch_scc1 L_fi_done
        v_lshlrev_b32 v20, 7, v{vL}
        s_mov_b32 s{sT0}, {FLG_OFF}
        buffer_store_dword v24, v20, s[{S_WS}:{S_WS+3}], s{sT0} offen sc1
        s_add_u32 s{sT0}, s{sT0}, 8192
        buffer_store_dword v24, v20, s[{S_WS}:{S_WS+3}], s{sT0} offen sc1
        s_waitcnt vmcnt(0)
        v_mov_b32 v24, 1
        v_mov_b32 v20, {D_FLAGRDY}
        s_mov_b64 exec, 1
        buffer_store_dword v24, v20, s[{S_DBG}:{S_DBG+3}], 0 offen sc1
        s_mov_b64 exec, -1
        L_fi_done:
        ''')
    A(f'''
    v_lshlrev_b32 v{vL16}, 4, v{vL}
    v_lshrrev_b32 v20, 4, v{vL}          ; g
    v_and_b32 v21, 15, v{vL}             ; n
    v_bfe_u32 v22, v{vL}, 1, 1
    v_mov_b32 v{vIdx}, 0x4444
    v_mov_b32 v23, 0xeeee
    v_cmp_eq_u32 vcc, 1, v22
    s_nop 1
    v_cndmask_b32 v{vIdx}, v{vIdx}, v23, vcc
    s_mov_b64 s[{sEta}:{sEta+1}], vcc
    v_cmp_gt_u32 vcc, 32, v{vL}
    s_nop 1
    s_mov_b64 s[{sLo}:{sLo+1}], vcc
    v_lshrrev_b32 v22, 2, v21
    v_lshl_add_u32 v22, v20, 2, v22
    v_lshlrev_b32 v22, 11, v22
    v_and_b32 v23, 3, v21
    v_lshl_add_u32 v{vPst4}, v23, 4, v22
    s_lshl_b32 s{sT0}, s{sP}, 6
    v_add_u32 v{vPst4}, s{sT0}, v{vPst4}
    v_lshlrev_b32 v22, 2, v20
    v_add_u32 v22, s{sW}, v22
    v_lshlrev_b32 v22, 11, v22
    v_add_u32 v22, s{sT0}, v22
    v_lshl_add_u32 v{vPst1}, v21, 2, v22
    v_and_b32 v22, 1, v20
    v_lshlrev_b32 v22, 1, v22
    v_lshrrev_b32 v24, 1, v20
    v_add_u32 v22, v22, v24
    v_lshlrev_b32 v22, 4, v22
    v_lshl_add_u32 v{vPub}, v23, 2, v22
    v_mul_u32_u24 v22, {2*QP}, v20
    s_lshl_b32 s{sT0}, s{sW}, 6
    v_and_b32 v24, 3, v21
    v_bfe_u32 v25, v21, 2, 1
    v_lshl_add_u32 v24, v25, 3, v24
    v_bfe_u32 v25, v21, 3, 1
    v_lshl_add_u32 v24, v25, 2, v24
    v_lshl_add_u32 v22, v24, 1, v22
    v_add_u32 v22, s{sT0}, v22
    v_add_u32 v{vQw}, {L_QX}, v22
    v_lshrrev_b32 v22, 2, v21
    v_lshlrev_b32 v22, 1, v22
    v_and_b32 v24, 1, v21
    v_add_u32 v22, v22, v24
    v_mul_u32_u24 v22, {QP}, v22
    v_lshl_add_u32 v22, v20, 4, v22
    v_add_u32 v{vQr}, {L_QX}, v22
    v_lshrrev_b32 v22, 2, v21
    v_lshlrev_b32 v22, 1, v22
    v_and_b32 v23, 1, v21
    v_add_u32 v22, v22, v23
    v_mul_u32_u24 v22, {QP}, v22
    v_lshl_add_u32 v22, v20, 4, v22
    v_add_u32 v{vKr}, {L_KM}, v22
    s_lshr_b32 s{sT0}, s{sW}, 1
    s_lshl_b32 s{sT0}, s{sT0}, 10
    s_and_b32 s{sT1}, s{sW}, 1
    s_lshl_b32 s{sT1}, s{sT1}, 3
    s_add_u32 s{sT0}, s{sT0}, s{sT1}
    s_add_u32 s{sT0}, s{sT0}, {L_OX}
    v_add_u32 v{vOw}, s{sT0}, v{vL16}
    s_mul_i32 s{sT0}, s{sW}, {WVW}
    s_add_u32 s{sT0}, s{sT0}, {L_W}
    v_add_u32 v{vWL}, s{sT0}, v{vL16}
    v_lshlrev_b32 v22, 4, v21
    v_lshl_add_u32 v{vKV}, v20, 2, v22
    v_and_b32 v22, 7, v21
    v_mov_b32 v24, 0x3f80
    v_mov_b32 v25, 0x3f800000
    v_and_b32 v23, 1, v22
    v_cmp_eq_u32 vcc, 1, v23
    s_nop 1
    v_cndmask_b32 v24, v24, v25, vcc
    v_lshrrev_b32 v23, 1, v22
    ''')
    for r in range(4):
        A(f'''v_cmp_eq_u32 vcc, {r}, v23
        s_nop 1
        v_cndmask_b32 v{vSel+r}, 0, v24, vcc''')
    A(f'''
    s_lshl_b32 s{sRole}, s{sP}, 1
    s_add_u32 s{sRole}, s{sRole}, s{sW}
    s_cmp_lt_u32 s{sW}, 2
    s_cbranch_scc1 L_role_ok
    s_add_u32 s{sRole}, s{sP}, 64
    s_cmp_eq_u32 s{sW}, 2
    s_cselect_b32 s{sT0}, 1, 0
    s_cmp_lt_u32 s{sP}, 16
    s_cselect_b32 s{sT0}, s{sT0}, 0
    s_cmp_eq_u32 s{sT0}, 1
    s_cselect_b32 s{sRole}, s{sRole}, -1
    L_role_ok:
    s_lshr_b32 s{sT0}, s{sRole}, 4
    s_lshl_b32 s{sT0}, s{sT0}, 10
    s_and_b32 s{sT1}, s{sRole}, 3
    s_lshl_b32 s{sT1}, s{sT1}, 8
    s_add_u32 s{sT0}, s{sT0}, s{sT1}
    s_lshr_b32 s{sT1}, s{sRole}, 2
    s_and_b32 s{sT1}, s{sT1}, 3
    s_lshl_b32 s{sT1}, s{sT1}, 6
    s_add_u32 s{sT0}, s{sT0}, s{sT1}
    s_mul_i32 s{sMemB}, s{sX}, {MEM_X}
    s_add_u32 s{sMemB}, s{sMemB}, {MEM_OFF}
    s_xor_b32 s{sT1}, s{sX}, 1
    s_mul_i32 s{sT1}, s{sT1}, {MEM_X}
    s_add_u32 s{sT1}, s{sT1}, {MEM_OFF}
    s_add_u32 s{sPubL}, s{sMemB}, s{sT0}
    s_add_u32 s{sPubR}, s{sT1}, s{sT0}
    s_add_u32 s{sPubR}, s{sPubR}, 5120
    s_add_u32 s{sRstR}, s{sPubL}, 5120
    s_mul_i32 s{sPartW}, s{sX}, {2*PART_PAR}
    s_add_u32 s{sPartW}, s{sPartW}, {PART_OFF}
    s_lshl_b32 s{sT0}, s{sRole}, 11
    s_add_u32 s{sPartR}, s{sPartW}, s{sT0}
    s_lshl_b32 s{sQ4}, s{sW}, 15
    s_lshl_b32 s{sT0}, s{sW}, 4
    s_mov_b64 s[{sQm}:{sQm+1}], 0xffff
    s_lshl_b64 s[{sQm}:{sQm+1}], s[{sQm}:{sQm+1}], s{sT0}
    s_mov_b32 s{sE0}, 0x000F000F
    s_mov_b32 s{sE0+1}, 0x000F000F
    s_mov_b32 s{sC}, 0x3e0293ee
    s_mov_b32 s{sFail}, 0
    s_mov_b32 s{sGlob}, 0
    s_lshl_b32 s{sT0}, s{sP}, 13
    s_add_u32 s{sKX}, s{sT0}, {KX_OFF}
    s_add_u32 s{sVX}, s{sT0}, {VX_OFF}
    s_cmp_eq_u32 s{sW}, 0
    s_cselect_b32 s{sPfK}, s{sKX}, s{sVX}
    s_lshl_b32 s{sT0}, s{sW}, 11
    s_add_u32 s{sVX}, s{sVX}, s{sT0}
    s_lshl_b32 s{sT0}, s{sP}, 11
    s_lshl_b32 s{sT1}, s{sW}, 9
    s_add_u32 s{sT0}, s{sT0}, s{sT1}
    s_mul_i32 s{sT1}, s{sX}, {VM_OFF-KM_OFF}
    s_add_u32 s{sT0}, s{sT0}, s{sT1}
    s_add_u32 s{sKMo}, s{sT0}, {KM_OFF}
    ''')
    A(f'''
    v_mov_b32 v24, -1
    v_mov_b32 v25, -1
    v_mov_b32 v26, -1
    v_mov_b32 v27, -1
    s_mul_i32 s{sT0}, s{sP}, 10240
    s_add_u32 s{sT0}, s{sT0}, s{sPartW}
    s_mul_i32 s{sT1}, s{sW}, 2560
    s_add_u32 s{sT0}, s{sT0}, s{sT1}
    buffer_store_dwordx4 v[24:27], v{vL16}, s[{S_WS}:{S_WS+3}], s{sT0} offen sc1
    buffer_store_dwordx4 v[24:27], v{vL16}, s[{S_WS}:{S_WS+3}], s{sT0} offen offset:1024 sc1
    s_mov_b32 exec_hi, 0
    buffer_store_dwordx4 v[24:27], v{vL16}, s[{S_WS}:{S_WS+3}], s{sT0} offen offset:2048 sc1
    s_mov_b64 exec, -1
    s_cmp_lg_u32 s{sW}, 0
    s_cbranch_scc1 L_minit_done
    s_mul_i32 s{sT0}, s{sP}, 960
    s_add_u32 s{sT0}, s{sT0}, s{sMemB}
    v_cmp_gt_u32 vcc, 60, v{vL}
    s_and_saveexec_b64 s[{sT2}:{sT2+1}], vcc
    buffer_store_dwordx4 v[24:27], v{vL16}, s[{S_WS}:{S_WS+3}], s{sT0} offen sc1
    s_mov_b64 exec, -1
    L_minit_done:
    s_mul_i32 s{sT7}, s{sW}, {WVW}
    s_add_u32 s{sT7}, s{sT7}, {L_W}
    v_lshrrev_b32 v28, 2, v{vL}
    v_lshlrev_b32 v28, 13, v28
    v_and_b32 v29, 3, v{vL}
    v_lshl_add_u32 v28, v29, 4, v28
    v_lshrrev_b32 v29, 3, v{vL}
    v_mul_u32_u24 v29, 1280, v29
    v_and_b32 v30, 7, v{vL}
    v_lshl_add_u32 v29, v30, 4, v29
    v_lshrrev_b32 v30, 1, v{vL}
    v_mul_u32_u24 v30, 1280, v30
    v_and_b32 v31, 1, v{vL}
    v_lshl_add_u32 v30, v31, 4, v30
    v_lshrrev_b32 v20, 4, v{vL}
    v_bfe_u32 v21, v{vL}, 2, 2
    v_and_b32 v22, 3, v{vL}
    v_lshlrev_b32 v31, 10, v21
    v_lshl_add_u32 v31, v20, 7, v31
    v_lshl_add_u32 v31, v22, 3, v31
    v_lshlrev_b32 v32, 9, v20
    v_lshl_add_u32 v32, v21, 6, v32
    v_lshl_add_u32 v32, v22, 3, v32
    v_add_u32 v31, s{sT7}, v31
    v_add_u32 v32, s{sT7}, v32
    v_and_b32 v23, 1, v20
    v_lshlrev_b32 v33, 12, v23
    v_lshrrev_b32 v23, 1, v20
    v_lshl_add_u32 v33, v23, 9, v33
    v_lshl_add_u32 v33, v21, 7, v33
    v_lshl_add_u32 v33, v22, 3, v33
    v_add_u32 v33, s{sT7}, v33
    v_and_b32 v23, 1, v20
    v_lshlrev_b32 v34, 10, v23
    v_lshrrev_b32 v23, 1, v20
    v_lshl_add_u32 v34, v23, 7, v34
    v_lshl_add_u32 v34, v21, 5, v34
    v_lshl_add_u32 v34, v22, 3, v34
    v_add_u32 v34, s{sT7}, v34
    ''')
    WP=8192
    A(f'''
    s_mul_i32 s{sT0}, s{sP}, 163840
    s_mul_i32 s{sT1}, s{sX}, 640
    s_add_u32 s{sT0}, s{sT0}, s{sT1}
    s_lshl_b32 s{sT1}, s{sW}, 7
    s_add_u32 s{sT2}, s{sT0}, s{sT1}
    s_lshl_b32 s{sT1}, s{sW}, 5
    s_add_u32 s{sT3}, s{sT0}, s{sT1}
    s_add_u32 s{sT3}, s{sT3}, 512
    ''')
    srd(A,S_TMP,64,65,32*128*640*2)
    for i in range(16):
        A(f's_add_u32 s{sT4}, s{sT2}, {i*8*1280}')
        A(f's_add_u32 m0, s{sT7}, {i*1024}')
        A(f'buffer_load_dwordx4 v29, s[{S_TMP}:{S_TMP+3}], s{sT4} offen lds')
    for i in range(4):
        A(f's_add_u32 s{sT4}, s{sT3}, {i*32*1280}')
        A(f's_add_u32 m0, s{sT7}, {16384+i*1024}')
        A(f'buffer_load_dwordx4 v30, s[{S_TMP}:{S_TMP+3}], s{sT4} offen lds')
    A(f'''
    s_mul_i32 s{sT0}, s{sX}, {320*WP}
    s_xor_b32 s{sT1}, s{sX}, 1
    s_mul_i32 s{sT1}, s{sT1}, {320*WP}
    s_lshl_b32 s{sT2}, s{sP}, 8
    s_lshl_b32 s{sT3}, s{sW}, 6
    s_add_u32 s{sT2}, s{sT2}, s{sT3}
    s_add_u32 s{sT0}, s{sT0}, s{sT2}
    s_add_u32 s{sT1}, s{sT1}, s{sT2}
    s_lshl_b32 s{sT6}, s{sW}, 12
    ''')
    ptr={'q':(58,59),'k':(60,61),'v':(62,63)}
    ring=[('q',b) for b in range(10)]+[('k',b) for b in range(5,10)]+[('v',b) for b in range(5,10)]+[('k',0)]
    final=[('v',b) for b in range(5)]+[('k',b) for b in range(2,5)]
    jobs=[]
    slotseq=[5,6,7]+[ (i%8) for i in range(len(ring)-3)]
    for j,(m,b) in enumerate(ring): jobs.append((m,b,slotseq[j]*4096))
    for j,(m,b) in enumerate(final): jobs.append((m,b,j*4096))
    jobs.append(('k',1,None))
    cur=[None]
    def issue(j):
        m,b,sl=jobs[j]
        if cur[0]!=m:
            srd(A,S_TMP,ptr[m][0],ptr[m][1],640*4096*2); cur[0]=m
        basereg=sT0 if b<5 else sT1
        Q=b%5
        for i in range(4):
            A(f's_add_u32 s{sT4}, s{basereg}, {(64*Q+16*i)*WP}')
            if sl is not None: A(f's_add_u32 m0, s{sT7}, {sl+i*1024}')
            else: A(f's_add_u32 m0, s{sT6}, {i*1024}')
            A(f'buffer_load_dwordx4 v28, s[{S_TMP}:{S_TMP+3}], s{sT4} offen lds')
    def consume(j):
        m,b,sl=jobs[j]
        Q=b%5
        areg = 31 if Q<4 else 32
        if sl is None:
            A(f'v_subrev_u32 v35, s{sT7}, v{areg}')
            A(f'v_add_u32 v35, s{sT6}, v35')
            areg=35; sl=0
        ohi,ojh=(512,64) if Q<4 else (2048,256)
        tolds=[]
        for t in range(2):
            kind,base=home(m,t,b)
            if kind=='lds':
                tolds.append((t,base)); kind,base='v',RA+t*8
            for hi in range(2):
                for jh in range(2):
                    A(f'ds_read_b64_tr_b16 {kind}[{base+hi*4+jh*2}:{base+hi*4+jh*2+1}], v{areg} offset:{sl+hi*ohi+jh*ojh+t*32}')
        A('s_waitcnt lgkmcnt(0)')
        for t,off in tolds:
            for hi in range(2):
                A(f'ds_write_b128 v{vWL}, v[{RA+t*8+hi*4}:{RA+t*8+hi*4+3}] offset:{off+hi*1024}')
        if tolds: A('s_waitcnt lgkmcnt(0)')
    for j in range(3): issue(j)
    A('s_waitcnt vmcnt(12)')
    for lt in range(5):
        for k2 in range(2):
            kind,base=WO(lt,k2)
            for hi in range(2):
                for jh in range(2):
                    if lt<4: A(f'ds_read_b64_tr_b16 {kind}[{base+hi*4+jh*2}:{base+hi*4+jh*2+1}], v33 offset:{k2*8192+jh*2048+hi*1024+lt*32}')
                    else:    A(f'ds_read_b64_tr_b16 {kind}[{base+hi*4+jh*2}:{base+hi*4+jh*2+1}], v34 offset:{16384+k2*2048+jh*512+hi*256}')
    A('s_waitcnt lgkmcnt(0)')
    n=len(jobs); issued=3; consumed=0
    lastuse={}
    def slot_free(j):
        sl=jobs[j][2]
        if sl is None: return True
        prev=[jj for jj in range(j) if jobs[jj][2]==sl]
        return (not prev) or max(prev)<consumed
    while consumed<n:
        while issued<n and slot_free(issued) and issued-consumed<8:
            issue(issued); issued+=1
        A(f's_waitcnt vmcnt({4*(issued-consumed-1)})')
        consume(consumed); consumed+=1
    srd(A,S_TMP,56,57,8*640*2)
    A(f'''
    s_barrier
    v_lshrrev_b32 v20, 4, v{vL}
    v_and_b32 v21, 15, v{vL}
    v_lshrrev_b32 v22, 2, v21
    v_lshlrev_b32 v22, 1, v22
    v_and_b32 v23, 1, v21
    v_add_u32 v22, v22, v23
    v_mul_u32_u24 v22, 1280, v22
    v_bfe_u32 v23, v21, 1, 1
    v_lshl_add_u32 v24, v23, 6, v22
    v_lshl_add_u32 v24, v20, 3, v24
    v_lshl_add_u32 v25, v20, 5, v22
    v_lshl_add_u32 v25, v23, 2, v25
    s_mul_i32 s{sT0}, s{sX}, 640
    s_xor_b32 s{sT1}, s{sX}, 1
    s_mul_i32 s{sT1}, s{sT1}, 640
    ''')
    for w in range(4):
        A(f's_cmp_lg_u32 s{sW}, {w}')
        A(f's_cbranch_scc1 L_m0_{w}')
        bl=[b for b in range(10) if b%4==w]
        for k,b in enumerate(bl):
            base=sT0 if b<5 else sT1
            Q=b%5
            for m in range(4):
                d=RA+k*4+m
                if Q<4:
                    A(f'buffer_load_ushort v{d}, v24, s[{S_TMP}:{S_TMP+3}], s{base} offen offset:{128*Q+2*m}')
                    A(f'buffer_load_ushort v{d+16}, v24, s[{S_TMP}:{S_TMP+3}], s{base} offen offset:{128*Q+2*m+32}')
                else:
                    A(f'buffer_load_dword v{d}, v25, s[{S_TMP}:{S_TMP+3}], s{base} offen offset:{512+8*m}')
        A('s_waitcnt vmcnt(0)')
        for k,b in enumerate(bl):
            if b%5<4:
                for m in range(4): A(f'v_lshl_or_b32 v{RA+k*4+m}, v{RA+k*4+m+16}, 16, v{RA+k*4+m}')
        for k,b in enumerate(bl):
            A(f'ds_write_b128 v{vL16}, v[{RA+k*4}:{RA+k*4+3}] offset:{L_MEMA+b*1024}')
        A(f'L_m0_{w}:')
    A('s_waitcnt lgkmcnt(0)')
    A(f'''
    s_waitcnt vmcnt(0)
    s_barrier
    s_cmp_lg_u32 s{sW}, 0
    s_cbranch_scc1 L_arr_done
    s_mov_b64 exec, 1
    v_mov_b32 v20, 1
    v_mov_b32 v21, 128
    buffer_atomic_add v20, v21, s[{S_DBG}:{S_DBG+3}], 0 offen
    s_mov_b32 s{sCnt}, 0
    L_sb_poll:
    buffer_load_dword v20, v21, s[{S_DBG}:{S_DBG+3}], 0 offen sc1
    s_waitcnt vmcnt(0)
    v_readfirstlane_b32 s{sT0}, v20
    s_add_u32 s{sCnt}, s{sCnt}, 1
    s_cmp_ge_u32 s{sCnt}, 2000000
    s_cbranch_scc1 L_sb_out
    s_cmp_lt_u32 s{sT0}, 64
    s_cbranch_scc1 L_sb_poll
    L_sb_out:
    s_mov_b64 exec, -1
    L_arr_done:
    s_barrier
    ''')

WS=f's[{S_WS}:{S_WS+3}]'
def kx_dma(A, segreg):
    A(f'''
    s_add_u32 s{sT1}, s{segreg}, s{sKX}
    s_add_u32 s{sT2}, s{sT1}, 4096
    s_mov_b32 m0, {L_KX}
    s_nop 0
    ''')
    for i in range(4): A(f'buffer_load_dwordx4 v{vL16}, {WS}, s{sT1} offen offset:{1024*i} lds')
    A(f's_mov_b32 m0, {L_KX+4096}')
    A('s_nop 0')
    for i in range(4): A(f'buffer_load_dwordx4 v{vL16}, {WS}, s{sT2} offen offset:{1024*i} lds')

def mem_dma(A, half):
    if CFG.nocomm: return
    o=half*5120
    A(f'''
    s_add_u32 s{sT1}, s{sMemCur}, {o}
    s_add_u32 s{sT2}, s{sMemCur}, {o+4096}
    s_mov_b32 m0, {L_MEMA+o}
    s_nop 0
    ''')
    for i in range(4): A(f'buffer_load_dwordx4 v{vL16}, {WS}, s{sT1} offen offset:{1024*i} {CFG.dmaflags} lds')
    A(f's_mov_b32 m0, {L_MEMA+o+4096}')
    A('s_nop 0')
    A(f'buffer_load_dwordx4 v{vL16}, {WS}, s{sT2} offen {CFG.dmaflags} lds')
    if CFG.dmawait and half==0:
        stamp(A,70); A('s_waitcnt vmcnt(0)'); stamp(A,71)

def rem_dma(A):
    if CFG.nocomm or CFG.norem: return
    l=A.newlabel('L_rd')
    A(f's_cmp_eq_u32 s{sStep}, 0'); A(f's_cbranch_scc1 {l}')
    A(f'''
    s_lshl_b32 s{sT2}, s{sW}, 10
    s_add_u32 s{sT1}, s{sMemCur}, s{sT2}
    s_add_u32 s{sT1}, s{sT1}, 5120
    s_add_u32 m0, s{sT2}, {L_MEMA+5120}
    s_add_u32 s{sT2}, s{sMemCur}, {5120+4096}
    buffer_load_dwordx4 v{vL16}, {WS}, s{sT1} offen {CFG.dmaflags} lds
    s_mov_b32 m0, {L_MEMA+9216}
    s_mov_b64 exec, s[{sQm}:{sQm+1}]
    buffer_load_dwordx4 v{vL16}, {WS}, s{sT2} offen {CFG.dmaflags} lds
    s_mov_b64 exec, -1
    {l}:''')

sRdy=57
def kv_wait(A, segexpr_reg):
    if not CFG.merged: return
    l=A.newlabel('L_kvw')
    A(f'''
    s_lshr_b32 s{sT1}, s{segexpr_reg}, 2
    s_cmp_lt_u32 s{sT1}, s{sRdy}
    s_cbranch_scc1 {l}
    s_cmp_ge_u32 s{sT1}, 16
    s_cbranch_scc1 {l}
    s_lshl_b32 s{sT2}, s{sT1}, 7
    s_add_u32 s{sT2}, s{sT2}, {FLG_OFF+F_KV*128}
    s_add_u32 s{sRdy}, s{sT1}, 1
    s_mov_b32 s{sCnt}, 0
    v_mov_b32 v{vT2}, 0
    {l}_p:
    buffer_load_dword v{vT}, v{vT2}, {WS}, s{sT2} offen sc1
    s_waitcnt vmcnt(0)
    v_readfirstlane_b32 s{sT1}, v{vT}
    s_add_u32 s{sCnt}, s{sCnt}, 1
    s_cmp_ge_u32 s{sCnt}, 400000
    s_cbranch_scc1 L_fail
    s_cmp_lt_u32 s{sT1}, 32
    s_cbranch_scc1 {l}_p
    {l}:''')

def w3_only(A, fn, cond_step_nonzero=True):
    l=A.newlabel('L_w3')
    A(f's_cmp_lg_u32 s{sW}, 3')
    A(f's_cbranch_scc1 {l}')
    if cond_step_nonzero:
        A(f's_cmp_eq_u32 s{sStep}, 0')
        A(f's_cbranch_scc1 {l}')
    fn()
    A(f'{l}:')

def tree_check(A, regs, tmps):
    regs=list(regs); t=list(tmps)[:4]
    nch=min(len(t), max(1,(len(regs)+2)//3))
    c=[]
    for k in range(nch):
        if len(regs)>=3:
            A(f'v_max3_u32 v{t[k]}, v{regs[0]}, v{regs[1]}, v{regs[2]}'); regs=regs[3:]; c.append(t[k])
    k=0
    while len(regs)>=2:
        A(f'v_max3_u32 v{c[k%len(c)]}, v{c[k%len(c)]}, v{regs[0]}, v{regs[1]}'); regs=regs[2:]; k+=1
    c2=c+regs
    while len(c2)>1:
        if len(c2)>=3:
            A(f'v_max3_u32 v{c2[0]}, v{c2[0]}, v{c2[1]}, v{c2[2]}'); c2=[c2[0]]+c2[3:]
        else:
            A(f'v_max_u32 v{c2[0]}, v{c2[0]}, v{c2[1]}'); c2=[c2[0]]
    A(f'v_cmp_eq_u32 vcc, -1, v{c2[0]}')

def spin(A, name, half, tmps):
    A(f's_mov_b32 s{sCnt}, 0')
    A(f'{name}:')
    if half==0: w3_only(A, lambda: mem_dma(A,0))
    else: rem_dma(A)
    for b in range(5): A(f'ds_read_b128 v[{RA+4*b}:{RA+4*b+3}], v{vL16} offset:{L_MEMA+half*5120+b*1024}')
    A(f"""s_add_u32 s{sCnt}, s{sCnt}, 1
    s_cmp_ge_u32 s{sCnt}, 400000
    s_cbranch_scc1 L_fail""")
    A('s_waitcnt lgkmcnt(0)')
    A.lq=[]
    if CFG.blk and half==0:
        A('s_mov_b32 s71, 0')
        for b in range(5):
            A(f'v_max3_u32 v86, v{RA+4*b}, v{RA+4*b+1}, v{RA+4*b+2}')
            A(f'v_max_u32 v86, v86, v{RA+4*b+3}')
            A('v_cmp_eq_u32 vcc, -1, v86')
            A('s_nop 4')
            A('s_bcnt1_i32_b64 s69, vcc')
            A('s_min_u32 s69, s69, 15')
            A(f's_lshl_b32 s69, s69, {4*b}')
            A('s_or_b32 s71, s71, s69')
        A(f"""
        s_cmp_lg_u32 s{sStep}, {CFG.stamp_step}
        s_cbranch_scc1 2f
        s_mov_b32 m0, s70
        s_or_b32 s71, s71, 0x7f000000
        s_movreld_b32 s72, s71
        s_add_u32 s70, s70, 1
        s_min_u32 s70, s70, 29
        2:
        """)
    tree_check(A,range(RA,RA+20),tmps)
    stamp(A,20+half)
    A(f's_cbranch_vccnz {name}')

def post(A, a):
    return [f'v_pk_add_f32 v[{a}:{a+1}], v[{a}:{a+1}], v[{a+2}:{a+3}]', f'v_cvt_pk_bf16_f32 v{a}, v{a}, v{a+1}']

def gen_step(A):
    X1=78; X2=82
    A('L_step:')
    stamp(A,1)
    seq=[]
    for b in range(5):
        seq+= [('q',0,b),('v',0,b),('q',1,b),('k',0,b),('v',1,b),('k',1,b)]
    ldsitems=[it for it in seq if home(*it)[0]=='lds']
    land={}; nxt=[0]
    def rd():
        if nxt[0]>=len(ldsitems): return
        it=ldsitems[nxt[0]]; slot=RW+(nxt[0]%3)*8; land[it]=slot
        off=home(*it)[1]
        A.lds(f'ds_read_b128 v[{slot}:{slot+3}], v{vWL} offset:{off}',it)
        A.lds(f'ds_read_b128 v[{slot+4}:{slot+7}], v{vWL} offset:{off+1024}',it)
        nxt[0]+=1
    for _ in range(3): rd()
    A.wl0()
    spin(A,'L_spinL',0,[vT,vT2,86,87])
    stamp(A,2)
    for it in seq:
        m,t,b=it
        h=home(*it)
        if h[0]=='lds':
            A.wl(it)
            smf(A,ACC[m]+4*t,RA+4*b,('v',land[it]))
            rd()
        else:
            smf(A,ACC[m]+4*t,RA+4*b,h)
        if it in CFG.remat: rem_dma(A)
    stamp(A,3)
    RVXn=78
    A(f's_lshl_b32 s{sT7}, s{sStep}, 18')
    A(f's_add_u32 s{sT1}, s{sT7}, s{sVX}')
    if not CFG.novx:
        A(f'buffer_load_dwordx4 v[{RVXn}:{RVXn+3}], v{vL16}, {WS}, s{sT1} offen')
        A(f'buffer_load_dwordx4 v[{RVXn+4}:{RVXn+7}], v{vL16}, {WS}, s{sT1} offen offset:1024')
    if not (CFG.norem or CFG.norstR): spin(A,'L_spinR',1,[vT,vT2,86,87])
    stamp(A,4)
    order=[(T,ks) for ks in range(4) for T in range(2)]
    kxslot=[RA,RA+4,RA+8,RA+12,RA+16,RA,RA+4,RA+8]
    def kxrd(k):
        T,ks=order[k]
        A.lds(f'ds_read_b128 v[{kxslot[k]}:{kxslot[k]+3}], v{vL16} offset:{L_KX+(T*4+ks)*1024}',('kx',k))
    def qw(a,t,base,hi):
        if not hi: A.lds(f'ds_write_b16 v{vQw}, v{a} offset:{t*32+base}','w')
        else: A.lds(f'ds_write_b16_d16_hi v{vQw}, v{a} offset:{t*32+QP+base}','w')
    qs=[(t,b) for b in range(5,10) for t in range(2)]
    fq={4:[f's_add_u32 s{sT1}, s{sT7}, s{sPfK}'],
        5:[f'v_lshlrev_b32 v{vT}, 7, v{vL}'],
        6:[f's_add_u32 s{sT1}, s{sT1}, {1<<18}']}
    for n,(t,b) in enumerate(qs):
        smf(A,aQ+4*t,RA+4*(b-5),home('q',t,b))
        for f in fq.get(n,[]): A(f)
        if n==7 and not CFG.nopf2:
            l=A.newlabel('L_pf')
            A(f's_cmp_ge_u32 s{sW}, 2'); A(f's_cbranch_scc1 {l}')
            A(f's_cmp_ge_u32 s{sStep}, 63'); A(f's_cbranch_scc1 {l}')
            A(f's_mov_b32 m0, {L_KM+2304}')
            A('s_nop 0')
            A(f'buffer_load_dword v{vT}, {WS}, s{sT1} offen lds')
            A(f'{l}:')
    stamp(A,40)
    a0,a1=aQ,aQ+4
    fk={0:['s_nop 0'],1:['s_nop 0'],2:['s_nop 0'],3:['s_nop 0'],
        4:[f'v_add_f32 v{a0}, v{a0}, v{a0+2}', f'v_add_f32 v{a0+1}, v{a0+1}, v{a0+3}'],
        5:[f'v_add_f32 v{a1}, v{a1}, v{a1+2}', f'v_add_f32 v{a1+1}, v{a1+1}, v{a1+3}'],
        6:[f'v_cvt_pk_bf16_f32 v{a0}, v{a0}, v{a0+1}'], 7:[f'v_cvt_pk_bf16_f32 v{a1}, v{a1}, v{a1+1}']}
    for n,(t,b) in enumerate(qs):
        smf(A,aK+4*t,RA+4*(b-5),home('k',t,b))
        for f in fk.get(n,[]): A(f)
        if n==6: stamp(A,401)
        if n==7: qw(a0,0,0,False)
        if n==8: qw(a0,0,0,True); qw(a1,1,0,False)
        if n==9: qw(a1,1,0,True)
    stamp(A,41)
    KB=L_KM-L_QX; b0,b1=aK,aK+4
    for n,(t,b) in enumerate(qs):
        smf(A,aV+4*t,RA+4*(b-5),home('v',t,b))
        if n in (0,1): A('s_nop 0')
        if n==2: A('s_nop 0')
        if n==3:
            A(f'v_add_f32 v{b0}, v{b0}, v{b0+2}'); A(f'v_add_f32 v{b0+1}, v{b0+1}, v{b0+3}')
        if n==4:
            A(f'v_add_f32 v{b1}, v{b1}, v{b1+2}'); A(f'v_add_f32 v{b1+1}, v{b1+1}, v{b1+3}')
        if n==5:
            A(f'v_cvt_pk_bf16_f32 v86, v{b0}, v{b0+1}'); A(f'v_cvt_pk_bf16_f32 v87, v{b1}, v{b1+1}')
        if n==5: stamp(A,421)
        if n==6:
            A.wl('w'); A('s_barrier')
            stamp(A,422)
            qw(86,0,KB,False); qw(86,0,KB,True)
        if n==7: qw(87,1,KB,False); qw(87,1,KB,True); stamp(A,423)
        if n==8:
            for ks in range(2): A.lds(f'ds_read_b128 v[{QF+4*ks}:{QF+4*ks+3}], v{vQr} offset:{ks*64}',('qf',ks))
        if n==9:
            for ks in range(2,4): A.lds(f'ds_read_b128 v[{QF+4*ks}:{QF+4*ks+3}], v{vQr} offset:{ks*64}',('qf',ks))
    stamp(A,42)
    for k in range(0,5): kxrd(k)
    A.wl('w')
    stamp(A,43)
    A('s_barrier')
    stamp(A,44)
    F=[aK,aK+4,RA+12,RA+16]
    for ks in range(2): A.lds(f'ds_read_b128 v[{F[ks]}:{F[ks]+3}], v{vKr} offset:{ks*64}',('kf',ks))
    S0=aQ; S1=aQ+4; S2=RA
    c0,c1=aV,aV+4
    vpost=[f'v_add_f32 v{c0}, v{c0}, v{c0+2}', f'v_add_f32 v{c0+1}, v{c0+1}, v{c0+3}', f'v_add_f32 v{c1}, v{c1}, v{c1+2}', f'v_add_f32 v{c1+1}, v{c1+1}, v{c1+3}',
           f'v_cvt_pk_bf16_f32 v{c0}, v{c0}, v{c0+1}', f'v_cvt_pk_bf16_f32 v{c1}, v{c1}, v{c1+1}']
    for k,(T,ks) in enumerate(order):
        A.wl(('qf',ks)); A.wl(('kx',k))
        acc=S0 if T==0 else S1
        c='0' if ks==0 else f'v[{acc}:{acc+3}]'
        A(f'v_mfma_f32_16x16x32_bf16 v[{acc}:{acc+3}], v[{kxslot[k]}:{kxslot[k]+3}], v[{QF+4*ks}:{QF+4*ks+3}], {c}')
        if k<3: kxrd(5+k)
        if k==3: A.lds(f'ds_read_b128 v[{F[2]}:{F[2]+3}], v{vKr} offset:{2*64}',('kf',2))
        if k==4: A.lds(f'ds_read_b128 v[{F[3]}:{F[3]+3}], v{vKr} offset:{3*64}',('kf',3))
        if k>=2 and vpost: A(vpost.pop(0))
    stamp(A,45)
    zero=[f'v_mov_b32 v{aV+1}, 0', f'v_mov_b32 v{aV+5}, 0', f'v_mov_b64 v[{aV+2}:{aV+3}], 0', f'v_mov_b64 v[{aV+6}:{aV+7}], 0']
    for ks in range(4):
        A.wl(('kf',ks))
        c='0' if ks==0 else f'v[{S2}:{S2+3}]'
        A(f'v_mfma_f32_16x16x32_bf16 v[{S2}:{S2+3}], v[{F[ks]}:{F[ks]+3}], v[{QF+4*ks}:{QF+4*ks+3}], {c}')
        if vpost: A(vpost.pop(0))
        A(zero.pop(0))
    stamp(A,5)
    dump(A,'S',[S0,S0+1,S0+2,S0+3,S1,S1+1,S1+2,S1+3,S2,S2+1,aV,aV+4])
    M=QF; M2=QF+1; PB=QF+4; RL=QF+2
    A(f'v_max3_f32 v{M}, v{S0}, v{S0+1}, v{S0+2}')
    A(f'v_max3_f32 v{M2}, v{S0+3}, v{S1}, v{S1+1}')
    A(f'v_max3_f32 v{M}, v{M}, v{S1+2}, v{S1+3}')
    A(f'v_mov_b32 v{PB+5}, 0')
    A(f'v_mov_b64 v[{PB+6}:{PB+7}], 0')
    A(f's_lshl_b32 s{sT6}, s{sStep}, 16')
    A(f's_add_u32 s{sT6}, s{sT6}, s{sKMo}')
    A(f's_cmp_eq_u32 s{sX}, 0')
    A('s_cbranch_scc1 L_pubd')
    A(f'buffer_store_dword v{aV}, v{vKV}, {WS}, s{sT6} offen {CFG.kvflag}')
    A(f'buffer_store_dword v{aV+4}, v{vKV}, {WS}, s{sT6} offen offset:256 {CFG.kvflag}')
    A('L_pubd:')
    A(f'v_max3_f32 v{M2}, v{M2}, v{S2}, v{S2+1}')
    A(f'v_max_f32 v{M}, v{M}, v{M2}')
    A(f'v_mov_b32 v{M2}, v{M}')
    A('s_nop 1')
    A(f'v_permlane32_swap_b32 v{M}, v{M2}')
    A(f'v_max_f32 v{M}, v{M}, v{M2}')
    A(f'v_mov_b32 v{M2}, v{M}')
    A('s_nop 1')
    A(f'v_permlane16_swap_b32 v{M}, v{M2}')
    A(f'v_max_f32 v{M}, v{M}, v{M2}')
    A(f'v_mul_f32 v{M}, s{sC}, v{M}')
    pairs=[S0,S0+2,S1,S1+2,S2]
    for r in pairs:
        A(f'v_pk_fma_f32 v[{r}:{r+1}], v[{r}:{r+1}], s[{sC2}:{sC2+1}], v[{M}:{M+1}] op_sel_hi:[1,1,0] neg_lo:[0,0,1] neg_hi:[0,0,1]')
    vals=[S0,S0+1,S0+2,S0+3,S1,S1+1,S1+2,S1+3,S2,S2+1]
    for i,r in enumerate(vals):
        A(f'v_exp_f32 v{r}, v{r}')
    A(f'v_cvt_pk_bf16_f32 v{PB}, v{S0}, v{S0+1}')
    A(f'v_cvt_pk_bf16_f32 v{PB+1}, v{S0+2}, v{S0+3}')
    A(f'v_cvt_pk_bf16_f32 v{PB+2}, v{S1}, v{S1+1}')
    A(f'v_cvt_pk_bf16_f32 v{PB+3}, v{S1+2}, v{S1+3}')
    A(f'v_cvt_pk_bf16_f32 v{PB+4}, v{S2}, v{S2+1}')
    stamp(A,51)
    dump(A,'P',[S0,S0+1,S0+2,S0+3,S1,S1+1,S1+2,S1+3,S2,S2+1,M])
    OA=aQ; LA=aK; ONE=aK+4
    if CFG.novx: A('s_nop 0')
    else:
        l=A.newlabel('L_vw')
        A(f's_cmp_eq_u32 s{sX}, 0'); A(f's_cbranch_scc1 {l}c')
        A(f's_cmp_ge_u32 s{sW}, 2'); A(f's_cbranch_scc1 {l}a')
        A('s_waitcnt vmcnt(3)'); A(f's_branch {l}b')
        A(f'{l}a:'); A('s_waitcnt vmcnt(2)'); A(f's_branch {l}b')
        A(f'{l}c:')
        A(f's_cmp_ge_u32 s{sW}, 2'); A(f's_cbranch_scc1 {l}d')
        A('s_waitcnt vmcnt(1)'); A(f's_branch {l}b')
        A(f'{l}d:'); A('s_waitcnt vmcnt(0)')
        A(f'{l}b:')
    A(f'v_mfma_f32_16x16x32_bf16 v[{OA}:{OA+3}], v[{RVXn}:{RVXn+3}], v[{PB}:{PB+3}], 0')
    A(f'v_mov_b32 v{ONE}, 0x3f803f80')
    A(f'v_mov_b32 v{ONE+1}, 0x3f803f80')
    A(f'v_mfma_f32_16x16x32_bf16 v[{OA+4}:{OA+7}], v[{RVXn+4}:{RVXn+7}], v[{PB}:{PB+3}], 0')
    A(f'v_mov_b32 v{ONE+2}, 0x3f803f80')
    A(f'v_mov_b32 v{ONE+3}, 0x3f803f80')
    A(f'v_mfma_f32_16x16x32_bf16 v[{OA}:{OA+3}], v[{aV}:{aV+3}], v[{PB+4}:{PB+7}], v[{OA}:{OA+3}]')
    A(f'v_mfma_f32_16x16x32_bf16 v[{OA+4}:{OA+7}], v[{aV+4}:{aV+7}], v[{PB+4}:{PB+7}], v[{OA+4}:{OA+7}]')
    dump(A,'L',[ONE,ONE+1,ONE+2,ONE+3,PB,PB+1,PB+2,PB+3,PB+4,PB+5,aV,aV+1,aV+4,aV+5])
    A(f'v_mfma_f32_16x16x32_bf16 v[{LA}:{LA+3}], v[{ONE}:{ONE+3}], v[{PB}:{PB+3}], 0')
    A(f'v_mfma_f32_16x16x32_bf16 v[{LA}:{LA+3}], v[{ONE}:{ONE+3}], v[{PB+4}:{PB+7}], v[{LA}:{LA+3}]')
    A('s_nop 5')
    for r in range(2): A(f'v_cndmask_b32_e64 v{OA+r}, v{OA+r}, v{OA+2+r}, s[{sEta}:{sEta+1}]')
    for r in range(2): A(f'v_cndmask_b32_e64 v{OA+4+r}, v{OA+4+r}, v{OA+6+r}, s[{sEta}:{sEta+1}]')
    A(f'v_rcp_f32 v{RL}, v{LA}')
    A('s_nop 0')
    A(f'v_pk_mul_f32 v[{OA}:{OA+1}], v[{OA}:{OA+1}], v[{RL}:{RL+1}] op_sel_hi:[1,0]')
    A(f'v_pk_mul_f32 v[{OA+4}:{OA+5}], v[{OA+4}:{OA+5}], v[{RL}:{RL+1}] op_sel_hi:[1,0]')
    dump(A,'O',[OA,OA+1,OA+4,OA+5,RL,LA])
    A(f'v_cvt_pk_bf16_f32 v{ONE}, v{OA}, v{OA+1}')
    A(f'v_cvt_pk_bf16_f32 v{ONE+1}, v{OA+4}, v{OA+5}')
    A.lds(f'ds_write_b64 v{vOw}, v[{ONE}:{ONE+1}]','ow')
    stamp(A,52)
    AY=RA; YA=RA+8
    for r in range(YA,YA+20,2): A(f'v_mov_b64 v[{r}:{r+1}], 0')
    A.wl0()
    A('s_barrier')
    stamp(A,6)
    A.lds(f'ds_read_b128 v[{AY}:{AY+3}], v{vL16} offset:{L_OX}','ay0')
    A.lds(f'ds_read_b128 v[{AY+4}:{AY+7}], v{vL16} offset:{L_OX+1024}','ay1')
    A(f"""
    s_mul_i32 s{sT0}, s{sPar}, {PART_PAR}
    s_add_u32 s{sT1}, s{sT0}, s{sPartW}
    s_add_u32 s{sT2}, s{sT1}, s{sQ4}
    s_add_u32 s{sT3}, s{sT1}, {4*32768}
    """)
    fill=[]
    if not CFG.nocomm:
        fill=[f'v_mov_b64 v[{aK}:{aK+1}], -1', f'v_mov_b64 v[{aK+2}:{aK+3}], -1', f's_lshl_b32 s{sT6}, s{sW}, 10', f'v_add_u32 v{vT2}, s{sT6}, v{vL16}',
              f'ds_write_b128 v{vT2}, v[{aK}:{aK+3}] offset:{L_MEMA}', f'ds_write_b128 v{vL16}, v[{aK}:{aK+3}] offset:{L_MEMA+4096}',
              f'ds_write_b128 v{vT2}, v[{aK}:{aK+3}] offset:{L_MEMA+5120}', f'ds_write_b128 v{vL16}, v[{aK}:{aK+3}] offset:{L_MEMA+9216}']
    A.wl('ay0')
    for lt in range(5):
        smf(A,YA+4*lt,AY,WO(lt,0))
        if lt<4 and fill: A(fill.pop(0))
    A.wl('ay1')
    YP=aQ
    for lt in range(5):
        smf(A,YA+4*lt,AY+4,WO(lt,1))
        if lt<4 and fill: A.lds(fill.pop(0),'rs')
    A('s_nop 3')
    for lt in range(5):
        a=YA+4*lt
        A(f'v_pk_add_f32 v[{a}:{a+1}], v[{a}:{a+1}], v[{a+2}:{a+3}]')
    for lt in range(5):
        a=YA+4*lt
        A(f'v_cvt_pk_bf16_f32 v{YP+lt}, v{a}, v{a+1}')
    dump(A,'Y',[YP,YP+1,YP+2,YP+3,YP+4])
    A.wl0()
    A(f"""
    s_cmp_eq_u32 s{sStep}, 63
    s_cbranch_scc1 L_last
    buffer_store_dwordx4 v[{YP}:{YP+3}], v{vPst4}, {WS}, s{sT2} offen
    buffer_store_dword v{YP+4}, v{vPst1}, {WS}, s{sT3} offen
    L_last:
    """)
    stamp(A,7)
    A(f"""
    s_cmp_lg_u32 s{sX}, 0
    s_cbranch_scc1 L_nokm
    v_lshrrev_b32 v{vT}, 4, v{vL}
    s_lshl_b32 s{sT1}, s{sW}, 1
    v_add_u32 v{vT}, s{sT1}, v{vT}
    v_mul_u32_u24 v{vT2}, {QP}, v{vT}
    v_and_b32 v86, 15, v{vL}
    v_lshl_add_u32 v{vT2}, v86, 4, v{vT2}
    v_lshlrev_b32 v{vT}, 8, v{vT}
    v_lshl_add_u32 v{vT}, v86, 4, v{vT}
    s_mov_b32 exec_hi, 0
    ds_read_b128 v[{RW}:{RW+3}], v{vT2} offset:{L_KM}
    s_lshl_b32 s{sT1}, s{sStep}, 16
    s_lshl_b32 s{sT2}, s{sP}, 11
    s_add_u32 s{sT1}, s{sT1}, s{sT2}
    s_add_u32 s{sT1}, s{sT1}, {KM_OFF}
    s_waitcnt lgkmcnt(0)
    buffer_store_dwordx4 v[{RW}:{RW+3}], v{vT}, {WS}, s{sT1} offen {CFG.kvflag}
    s_mov_b64 exec, -1
    L_nokm:
    s_cmp_eq_u32 s{sStep}, 63
    s_cbranch_scc1 L_done
    """)
    A('L_cut:')
    if CFG.cut is not None:
        A(f's_cmp_eq_u32 s{sStep}, 63'); A('s_cbranch_scc1 L_done')
    A.lq=[]
    A(f"""
    s_add_u32 s{sSlot}, s{sSlot}, 1
    s_cmp_eq_u32 s{sSlot}, 3
    s_cselect_b32 s{sSlot}, 0, s{sSlot}
    s_mul_i32 s{sT4}, s{sSlot}, 10240
    s_add_u32 s{sMemCur}, s{sT4}, s{sMemB}
    s_add_u32 s{sT5}, s{sSlot}, 2
    s_cmp_ge_u32 s{sT5}, 3
    s_cselect_b32 s{sT6}, 3, 0
    s_sub_u32 s{sT5}, s{sT5}, s{sT6}
    s_mul_i32 s{sT5}, s{sT5}, 10240
    s_add_u32 s{sT7}, s{sStep}, 1
    s_lshl_b32 s{sT7}, s{sT7}, 18
    """)
    if CFG.merged:
        A(f's_add_u32 s{sT6}, s{sStep}, 2'); kv_wait(A,sT6)
    if not CFG.nokx: w3_only(A, lambda: kx_dma(A,sT7), cond_step_nonzero=False)
    if CFG.kxwait:
        stamp(A,90); A('s_waitcnt vmcnt(0)'); stamp(A,91)
    for r in range(aQ,aV+8,2): A(f'v_mov_b64 v[{r}:{r+1}], 0')
    if CFG.nocomm: A('s_branch L_nored')
    A(f"""
    s_cmp_eq_u32 s{sRole}, -1
    s_cbranch_scc1 L_nored
    s_add_u32 s{sT0}, s{sT0}, s{sPartR}
    s_mov_b32 s{sCnt}, 0
    """)
    nops(A,CFG.dP)
    D=RA+8
    A(f"""
    L_pollP:
    buffer_load_dwordx4 v[{RA}:{RA+3}], v{vL16}, {WS}, s{sT0} offen sc1
    buffer_load_dwordx4 v[{RA+4}:{RA+7}], v{vL16}, {WS}, s{sT0} offen offset:1024 sc1
    s_add_u32 s{sCnt}, s{sCnt}, 1
    s_cmp_ge_u32 s{sCnt}, 200000
    s_cbranch_scc1 L_fail
    s_add_u32 s{sT1}, s{sPubL}, s{sT4}
    s_add_u32 s{sT2}, s{sPubR}, s{sT4}
    s_add_u32 s{sT3}, s{sPubL}, s{sT5}
    s_add_u32 s{sT6}, s{sRstR}, s{sT5}
    s_waitcnt vmcnt(0)
    """)
    tree_check(A,range(RA,RA+8),[vT,vT2,86])
    stamp(A,30)
    A(f"""
    s_cbranch_vccnz L_pollP
    v_mfma_f32_16x16x32_bf16 v[{D}:{D+3}], v[{vSel}:{vSel+3}], v[{RA}:{RA+3}], 0
    v_mfma_f32_16x16x32_bf16 v[{D}:{D+3}], v[{vSel}:{vSel+3}], v[{RA+4}:{RA+7}], v[{D}:{D+3}]
    v_mov_b64 v[{D+4}:{D+5}], -1
    v_mov_b64 v[{D+6}:{D+7}], -1
    s_nop 5
    """)
    for sh in (8,4):
        for r in range(4): A(f'v_add_f32_dpp v{D+r}, v{D+r}, v{D+r} row_ror:{sh} row_mask:0xf bank_mask:0xf')
    p_r=f'buffer_store_dword v{RA}, v{vPub}, {WS}, s{sT2} offen sc1'; p_l=f'buffer_store_dword v{RA}, v{vPub}, {WS}, s{sT1} offen'
    PUBS=(p_r+'\n'+p_l) if CFG.puborder==0 else (p_l+'\n'+p_r)
    if CFG.norem: PUBS=p_l
    A(f"""
    v_cvt_pk_bf16_f32 v{RA}, v{D}, v{D+2}
    v_cvt_pk_bf16_f32 v{RA+1}, v{D+1}, v{D+3}
    v_cndmask_b32_e64 v{RA}, v{RA+1}, v{RA}, s[{sLo}:{sLo+1}]
    s_mov_b64 exec, s[{sE0}:{sE0+1}]
    {PUBS}
    buffer_store_dword v{D+4}, v{vPub}, {WS}, s{sT3} offen
    {'s_nop 0' if (CFG.norem or CFG.norstR) else f'buffer_store_dword v{D+4}, v{vPub}, {WS}, s{sT6} offen sc1'}
    s_mov_b64 exec, -1
    buffer_store_dwordx4 v[{D+4}:{D+7}], v{vL16}, {WS}, s{sT0} offen
    buffer_store_dwordx4 v[{D+4}:{D+7}], v{vL16}, {WS}, s{sT0} offen offset:1024
    L_nored:
    """)
    stamp(A,8)
    if CFG.dW3:
        l=A.newlabel('L_dw')
        A(f's_cmp_lg_u32 s{sW}, 3'); A(f's_cbranch_scc1 {l}')
        nops(A,CFG.dW3)
        A(f'{l}:')
    nops(A,CFG.dL)
    A(f"""
    s_xor_b32 s{sPar}, s{sPar}, 1
    s_add_u32 s{sStep}, s{sStep}, 1
    s_branch L_step
    """)

def _gen_rest(A):
    A(f'''
    s_mov_b32 s{sStep}, 0
    s_mov_b32 s{sSlot}, 0
    s_mov_b32 s{sPar}, 0
    s_mov_b32 s{sMemCur}, 0
    s_mov_b32 s{sC2}, 0x3e0293ee
    s_mov_b32 s{sC2+1}, 0x3e0293ee
    s_mov_b32 s70, 0
    ''')
    for i in range(30): A(f's_mov_b32 s{72+i}, 0')
    A(f's_mov_b32 s{sRdy}, 0')
    A(f's_mov_b32 s{sT6}, 1'); kv_wait(A,sT6)
    A(f's_mov_b32 s{sT7}, 0')
    w3_only(A, lambda: kx_dma(A,sT7), cond_step_nonzero=False)
    A('s_waitcnt vmcnt(0)')
    A('s_barrier')
    for r in range(aQ,aV+8): A(f'v_mov_b32 v{r}, 0')
    A('s_memtime s[66:67]')
    A('s_memrealtime s[58:59]')
    A('s_waitcnt lgkmcnt(0)')
    A(f's_sub_u32 s56, s66, s54')
    A(f's_mov_b32 s54, s66')
    gen_step(A)
    A(f'''
    L_fail:
    s_mov_b32 s{sFail}, 1
    s_mov_b64 exec, -1
    L_done:
    s_memtime s[66:67]
    s_memrealtime s[60:61]
    s_waitcnt lgkmcnt(0)
    s_sub_u32 s60, s60, s58
    s_sub_u32 s{sT0}, s66, s54
    s_lshl_b32 s{sT1}, s{sX}, 5
    s_add_u32 s{sT1}, s{sT1}, s{sP}
    s_lshl_b32 s{sT1}, s{sT1}, 2
    s_add_u32 s{sT1}, s{sT1}, s{sW}
    s_lshl_b32 s{sT1}, s{sT1}, 8
    s_add_u32 s{sT1}, s{sT1}, {STAMP_OFF}
    ''')
    for i in range(30): A(f'v_writelane_b32 v20, s{72+i}, {i}')
    A(f'''
    v_writelane_b32 v20, s60, 60
    v_writelane_b32 v20, s56, 61
    v_writelane_b32 v20, s{sT0}, 62
    v_writelane_b32 v20, s{sFail}, 63
    v_lshlrev_b32 v21, 2, v{vL}
    buffer_store_dword v20, v21, s[{S_WS}:{S_WS+3}], s{sT1} offen
    s_waitcnt vmcnt(0)
    L_end:
    s_endpgm
    ''')

def gen_body(A, other='L_end', **kw):
    for k,v in kw.items(): setattr(CFG,k,v)
    gen_startup(A, other)
    _gen_rest(A)

def gen(name=KN, standalone=True, **kw):
    for k,v in kw.items(): setattr(CFG,k,v)
    A=Sched()
    if standalone:
        A('; @launch grid=(256,1,1) block=(256,1,1) lds=163840')
        A('.amdgcn_target "amdgcn-amd-amdhsa--gfx950"')
        A('.text')
    A.raw(kernel_header(name))
    gen_startup(A)
    _gen_rest(A)
    A.raw(kernel_desc(name))
    return A.text()

if __name__=='__main__':
    import sys
    open(sys.argv[1] if len(sys.argv)>1 else 'chain2.s','w').write(gen())
```

```python
from asmlib import *
from layout import *
import layout


def srd(A, base, lo, hi, nbytes):
    A(f's_mov_b32 s{base}, s{lo}')
    A(f's_and_b32 s{base+1}, s{hi}, 0xffff')
    A(f's_mov_b32 s{base+2}, {nbytes}')
    A(f's_mov_b32 s{base+3}, 0x20000')

S_WS=8
S_A=12
S_W=16
sW=22
sJ=23

def common_prologue(A, lane_done=False):
    A(f'''
    s_load_dwordx2 s[4:5], s[0:1], 112       ; ws
    s_load_dwordx4 s[72:75], s[0:1], 0       ; x, wqkv
    s_load_dwordx4 s[76:79], s[0:1], 16
    s_load_dwordx4 s[80:83], s[0:1], 40
    s_load_dwordx4 s[84:87], s[0:1], 56
    s_load_dwordx2 s[88:89], s[0:1], 72      ; Wo
    s_load_dwordx4 s[92:95], s[0:1], 88
    s_load_dwordx2 s[6:7], s[0:1], 104       ; dbg
    ''')
    if not lane_done:
        A(f'''
        v_lshrrev_b32 v1, 6, v0
        v_and_b32 v0, 63, v0
        s_nop 1
        v_readfirstlane_b32 s{sW}, v1
        ''')
    A('s_waitcnt lgkmcnt(0)')
    srd(A,S_WS,4,5,WS_BYTES)
P_X=72; P_WQKV=74; P_WPHI=76; P_WO_A=78; P_MEM0=80; P_WQ=82; P_WK=84; P_WV=86; P_WO=88; P_GATE=92; P_OUT=94

class G32:
    LW=[0,32768,65536]
    LA=[98304,114688,131072]
    vAd=2
    vWd=4
    vAr=6
    vBr=10
    vBr2=64
    FA=16
    FB=32
    ACC=128
    def __init__(s, A, apitch, wpitch, niter, swap=False):
        s.A=A; s.apitch=apitch; s.wpitch=wpitch; s.niter=niter
    def setup(s):
        A=s.A
        A(f'''
        v_lshrrev_b32 v14, 3, v0
        v_mul_u32_u24 v14, {s.apitch}, v14
        v_and_b32 v15, 7, v0
        v_lshrrev_b32 v16, 4, v0
        v_xor_b32 v17, v15, v16
        v_lshl_add_u32 v{s.vAd}, v17, 4, v14          ; even i
        v_xor_b32 v17, 4, v17
        v_lshl_add_u32 v{s.vAd+1}, v17, 4, v14        ; odd i
        v_lshrrev_b32 v14, 5, v0
        v_mul_lo_u32 v14, v14, s{40}          ; * wpitch (s40)
        v_and_b32 v15, 31, v0
        v_lshrrev_b32 v16, 5, v0
        v_lshlrev_b32 v16, 2, v16
        v_xor_b32 v17, v15, v16
        v_lshl_add_u32 v{s.vWd}, v17, 4, v14
        v_xor_b32 v17, 8, v17
        v_lshl_add_u32 v{s.vWd+1}, v17, 4, v14
        s_and_b32 s41, s{sW}, 1
        s_lshl_b32 s41, s41, 13               ; 64 rows * 128B
        v_and_b32 v14, 31, v0
        v_lshlrev_b32 v15, 7, v14
        s_add_u32 s41, s41, {s.LA[0]}
        v_add_u32 v15, s41, v15
        v_lshrrev_b32 v16, 1, v14
        v_and_b32 v16, 7, v16
        v_lshrrev_b32 v17, 5, v0              ; hh
        v_xor_b32 v16, v16, v17
        ''')
        for ks in range(4):
            A(f'v_xor_b32 v17, {2*ks}, v16')
            A(f'v_lshl_add_u32 v{s.vAr+ks}, v17, 4, v15')
        A(f'''
        v_bfe_u32 v14, v0, 2, 2               ; r
        v_lshrrev_b32 v15, 5, v0              ; hh
        v_lshlrev_b32 v15, 3, v15
        v_add_u32 v15, v15, v14               ; 8hh + r
        v_lshlrev_b32 v15, 9, v15             ; *512
        v_bfe_u32 v16, v0, 4, 1
        v_lshl_add_u32 v15, v16, 5, v15
        v_and_b32 v16, 3, v0
        v_lshl_add_u32 v15, v16, 3, v15
        s_lshr_b32 s41, s{sW}, 1
        s_lshl_b32 s41, s41, 2                ; 4wn
        ''')
        for nt in range(4):
            A(f's_add_u32 s42, s41, {nt}')
            A(f'v_xor_b32 v16, s42, v14')
            A(f'v_lshl_add_u32 v{s.vBr+nt}, v16, 6, v15')
            A(f'v_add_u32 v{s.vBr2+nt}, 0x10000, v{s.vBr+nt}')
    def dma(s, buf, sA, sWt):
        A=s.A
        out=[]
        for j in range(4):
            out.append([f's_add_u32 s44, s{sA}, s{46+j}', f's_add_u32 m0, s50, {s.LA[buf]+j*1024}', f'buffer_load_dwordx4 v{s.vAd+(j&1)}, s[{S_A}:{S_A+3}], s44 offen lds'])
        for j in range(8):
            out.append([f's_add_u32 s44, s{sWt}, s{52+j}', f's_add_u32 m0, s51, {s.LW[buf]+j*1024}', f'buffer_load_dwordx4 v{s.vWd+(j&1)}, s[{S_W}:{S_W+3}], s44 offen lds'])
        return out
    def dma_consts(s):
        A=s.A
        A(f's_mul_i32 s45, s{sW}, {4*8*s.apitch}')
        for j in range(4): A(f's_add_u32 s{46+j}, s45, {j*8*s.apitch}')
        A(f's_mul_i32 s45, s{sW}, s40')
        A(f's_lshl_b32 s45, s45, 4')
        for j in range(8):
            A(f's_mul_i32 s44, s40, {2*j}')
            A(f's_add_u32 s{52+j}, s45, s44')
        A(f's_lshl_b32 s50, s{sW}, 12')
        A(f's_lshl_b32 s51, s{sW}, 13')
    def compute(s, buf, swap, fill, first=False):
        A=s.A
        def rdA(ks,st):
            for mt in range(2):
                d=s.FA+st*8+mt*4
                A.lds(f'ds_read_b128 v[{d}:{d+3}], v{s.vAr+ks} offset:{s.LA[buf]-s.LA[0]+mt*4096}',('A',ks))
        def rdB(ks,st):
            for nt in range(4):
                d=s.FB+st*16+nt*4
                for jh in range(2):
                    br=(s.vBr if buf<2 else s.vBr2)+nt; off=(s.LW[buf] if buf<2 else 0)+(16*ks+4*jh)*512
                    A.lds(f'ds_read_b64_tr_b16 v[{d+2*jh}:{d+2*jh+1}], v{br} offset:{off}',('B',ks))
        rdA(0,0); rdB(0,0)
        for ks in range(4):
            st=ks&1
            if ks<3:
                rdA(ks+1,st^1); rdB(ks+1,st^1)
            A.wl(('B',ks))
            n=0
            for mt in range(2):
                for nt in range(4):
                    acc=s.ACC+(mt*4+nt)*16
                    a=f'v[{s.FA+st*8+mt*4}:{s.FA+st*8+mt*4+3}]'; b=f'v[{s.FB+st*16+nt*4}:{s.FB+st*16+nt*4+3}]'
                    if swap: a,b=b,a
                    c = '0' if (first and ks==0) else f'v[{acc}:{acc+15}]'
                    A(f'v_mfma_f32_32x32x16_bf16 v[{acc}:{acc+15}], {a}, {b}, {c}')
                    if fill and n%2==1:
                        for x in fill.pop(0): A(x)
                    n+=1
        while fill:
            for x in fill.pop(0): A(x)

LAOFFMAX=65535

def job_proj(A, name='JP', endlabel='L_end'):
    g=G32(A,1280,8192,10)
    A(f'{name}:')
    A(f'''
    s_lshr_b32 s24, s{sJ}, 8              ; mat
    s_bfe_u32 s25, s{sJ}, 0x40004         ; mb
    s_and_b32 s26, s{sJ}, 15              ; nb
    s_mov_b32 s40, 8192
    ''')
    srd(A,S_A,P_X,P_X+1,2048*640*2)
    A(f'''
    s_cmp_eq_u32 s24, 0
    s_cselect_b32 s28, s{P_WK}, s{P_WV}
    s_cselect_b32 s29, s{P_WK+1}, s{P_WV+1}
    s_cmp_eq_u32 s24, 2
    s_cselect_b32 s28, s{P_WQ}, s28
    s_cselect_b32 s29, s{P_WQ+1}, s29
    ''')
    srd(A,S_W,28,29,640*4096*2)
    g.setup(); g.dma_consts()
    A(f'''
    s_mul_i32 s30, s25, {128*1280}
    s_lshl_b32 s31, s26, 9
    ''')
    def adv():
        return [[f's_add_u32 s30, s30, 128', f's_add_u32 s31, s31, {64*8192}']]
    for k in range(2):
        for grp in g.dma(k,30,31):
            for x in grp: A(x)
        for x in adv()[0]: A(x)
    for swap in (1,0):
        lab=f'{name}_sw{swap}'
        if swap==1:
            A(f's_cmp_eq_u32 s24, 1'); A(f's_cbranch_scc1 {name}_sw0')
        A(f'{lab}:')
        for k in range(10):
            A(f's_waitcnt vmcnt({12 if k<9 else 0})')
            A('s_barrier')
            fill=[]
            if k+2<10: fill=g.dma((k+2)%3,30,31)+adv()
            A.lq=[]
            g.compute(k%3,swap,fill,first=(k==0))
        A('s_nop 15'); A('s_nop 3')
        A(f'''
        s_lshl_b32 s32, s25, 2
        s_and_b32 s33, s{sW}, 1
        s_lshl_b32 s33, s33, 1
        s_add_u32 s32, s32, s33
        s_lshl_b32 s32, s32, 5
        s_lshl_b32 s33, s26, 1
        s_add_u32 s32, s32, s33
        s_lshr_b32 s33, s{sW}, 1
        s_add_u32 s32, s32, s33
        s_lshl_b32 s32, s32, 13
        s_lshl_b32 s33, s24, 24
        s_add_u32 s32, s32, s33
        v_lshrrev_b32 v14, 5, v0            ; hh
        v_and_b32 v15, 31, v0               ; n
        ''')
        if swap==0:
            A('''
            v_lshrrev_b32 v16, 4, v15
            v_lshlrev_b32 v16, 10, v16
            v_and_b32 v17, 15, v15
            v_lshl_add_u32 v17, v14, 4, v17
            v_lshl_add_u32 v16, v17, 4, v16
            ''')
            offs=lambda nt,u: nt*2048+u*512
        else:
            A('''
            v_bfe_u32 v16, v15, 3, 1
            v_lshlrev_b32 v16, 12, v16
            v_lshrrev_b32 v17, 4, v15
            v_lshlrev_b32 v17, 3, v17
            v_bfe_u32 v18, v15, 2, 1
            v_lshl_add_u32 v17, v18, 2, v17
            v_and_b32 v18, 3, v15
            v_add_u32 v17, v17, v18
            v_lshl_add_u32 v17, v14, 4, v17
            v_lshl_add_u32 v16, v17, 4, v16
            ''')
            offs=lambda nt,u: nt*1024+u*512
        for mt in range(2):
            if mt==1: A(f's_add_u32 s32, s32, {32*8192}')
            for nt in range(4):
                acc=g.ACC+(mt*4+nt)*16
                for u in range(2):
                    d=20+((nt*2+u)%4)*4
                    for j in range(4): A(f'v_cvt_pk_bf16_f32 v{d+j}, v{acc+8*u+2*j}, v{acc+8*u+2*j+1}')
                    o=offs(nt,u)
                    if o<4096: A(f'buffer_store_dwordx4 v[{d}:{d+3}], v16, s[{S_WS}:{S_WS+3}], s32 offen offset:{o} sc1')
                    else:
                        A(f's_add_u32 s33, s32, {o&~4095}')
                        A(f'buffer_store_dwordx4 v[{d}:{d+3}], v16, s[{S_WS}:{S_WS+3}], s33 offen offset:{o&4095} sc1')
        A(f's_branch {endlabel}')
```

```python
from asmlib import *
from layout import *
import layout

from gemm import *

def job_prep(A, name='JPREP', endlabel='L_end'):
    A(f'{name}:')
    srd(A,S_A,P_WQKV,P_WQKV+1,640*1920*2)
    srd(A,S_W,P_WPHI,P_WPHI+1,32*400*2)
    A(f'''
    s_lshr_b32 s24, s{sJ}, 1              ; h
    s_and_b32 s25, s{sJ}, 1               ; which
    s_lshl_b32 s26, s{sW}, 6
    v_add_u32 v1, s26, v0                 ; tid
    s_mul_i32 s27, s24, 800
    v_lshlrev_b32 v2, 2, v1
    v_cmp_gt_u32 vcc, 200, v1
    s_and_saveexec_b64 s[28:29], vcc
    buffer_load_dword v3, v2, s[{S_W}:{S_W+3}], s27 offen
    s_waitcnt vmcnt(0)
    v_lshlrev_b32 v4, 16, v3
    v_and_b32 v5, 0xffff0000, v3
    v_lshlrev_b32 v6, 3, v1
    ds_write_b64 v6, v[4:5]
    s_mov_b64 exec, s[28:29]
    s_waitcnt lgkmcnt(0)
    s_barrier
    s_mul_i32 s27, s24, 40
    s_mul_i32 s28, s25, 1280
    s_add_u32 s27, s27, s28
    s_mul_i32 s30, s24, 40
    s_add_u32 s30, s30, s28
    s_add_u32 s30, s30, {WC_OFF}
    s_mov_b32 s31, 0
    {name}_row:
    v_add_u32 v2, s31, v1                 ; d
    v_cmp_gt_u32 vcc, 640, v2
    s_and_saveexec_b64 s[28:29], vcc
    s_cbranch_execz {name}_skip
    v_mul_u32_u24 v3, 3840, v2
    ''')
    for i in range(5): A(f'buffer_load_dwordx2 v[{10+2*i}:{11+2*i}], v3, s[{S_A}:{S_A+3}], s27 offen offset:{8*i}')
    A('s_waitcnt vmcnt(0)')
    for i in range(10):
        A(f'v_lshlrev_b32 v{20+2*i}, 16, v{10+i}')
        A(f'v_and_b32 v{21+2*i}, 0xffff0000, v{10+i}')
    A('v_mov_b32 v4, 0')
    for fq in range(5):
        for e in range(20):
            A(f'ds_read_b128 v[{44+4*(e%4)}:{47+4*(e%4)}], v4 offset:{(e*20+4*fq)*4}')
            if e%4==3 or e==19:
                A('s_waitcnt lgkmcnt(0)')
                for ee in range(e-3,e+1):
                    for r in range(4):
                        if ee==0: A(f'v_mul_f32 v{60+r}, v{20+ee}, v{44+4*(ee%4)+r}')
                        else: A(f'v_fmac_f32 v{60+r}, v{20+ee}, v{44+4*(ee%4)+r}')
        A(f'v_cvt_pk_bf16_f32 v{64+2*fq}, v60, v61')
        A(f'v_cvt_pk_bf16_f32 v{65+2*fq}, v62, v63')
    A('v_mul_u32_u24 v3, 2560, v2')
    for i in range(5): A(f'buffer_store_dwordx2 v[{64+2*i}:{65+2*i}], v3, s[{S_WS}:{S_WS+3}], s30 offen offset:{8*i} sc1')
    A(f'''
    {name}_skip:
    s_mov_b64 exec, s[28:29]
    s_add_u32 s31, s31, 256
    s_cmp_lt_u32 s31, 768
    s_cbranch_scc1 {name}_row
    ''')
    srd(A,S_A,P_X,P_X+1,2048*640*2)
    srd(A,S_W,P_GATE,P_GATE+1,640*2)
    A(f'''
    v_mul_u32_u24 v2, 20, v0
    ''')
    for i in range(5): A(f'buffer_load_dword v{10+i}, v2, s[{S_W}:{S_W+3}], 0 offen offset:{4*i}')
    A(f'''
    s_lshl_b32 s24, s{sJ}, 5
    s_lshl_b32 s25, s{sW}, 3
    s_add_u32 s24, s24, s25               ; token0
    s_mul_i32 s25, s24, 1280
    ''')
    for t in range(8):
        for i in range(5): A(f'buffer_load_dword v{20+5*t+i}, v2, s[{S_A}:{S_A+3}], s25 offen offset:{4*i}')
        A('s_add_u32 s25, s25, 1280')
    A('s_waitcnt vmcnt(0)')
    for i in range(5):
        A(f'v_lshlrev_b32 v{60+2*i}, 16, v{10+i}')
        A(f'v_and_b32 v{61+2*i}, 0xffff0000, v{10+i}')
    for t in range(8):
        for i in range(5):
            r=20+5*t+i
            A(f'v_lshlrev_b32 v70, 16, v{r}')
            A(f'v_and_b32 v71, 0xffff0000, v{r}')
            if i==0: A(f'v_mul_f32 v{72+t}, v70, v60')
            else: A(f'v_fmac_f32 v{72+t}, v70, v{60+2*i}')
            A(f'v_fmac_f32 v{72+t}, v71, v{61+2*i}')
    for sh in (1,2,4,8):
        A('s_nop 1')
        for t in range(8): A(f'v_add_f32_dpp v{72+t}, v{72+t}, v{72+t} row_ror:{sh} row_mask:0xf bank_mask:0xf')
    for sw in ('16','32'):
        for t in range(8):
            A(f'v_mov_b32 v70, v{72+t}')
            A('s_nop 1')
            A(f'v_permlane{sw}_swap_b32 v{72+t}, v70')
            A(f'v_add_f32 v{72+t}, v{72+t}, v70')
    A('v_mov_b32 v80, v72')
    for t in range(1,8):
        A(f'v_cmp_eq_u32 vcc, {t}, v0'); A('s_nop 1'); A(f'v_cndmask_b32 v80, v80, v{72+t}, vcc')
    A(f'''
    v_mul_f32 v80, 0xbfb8aa3b, v80        ; -log2e * x
    v_exp_f32 v80, v80
    s_nop 0
    v_add_f32 v80, 1.0, v80
    v_rcp_f32 v80, v80
    s_lshl_b32 s24, s24, 2
    s_add_u32 s24, s24, {G_OFF}
    v_lshlrev_b32 v2, 2, v0
    s_mov_b64 exec, 0xff
    buffer_store_dword v80, v2, s[{S_WS}:{S_WS+3}], s24 offen sc1
    s_mov_b64 exec, -1
    s_branch {endlabel}
    ''')

class G16:
    LX=[0,16384,32768]
    LWB=49152
    vXd=2
    vWd=4
    vXr=10
    vWr=12
    FX=16
    FW=32
    ACC=64
    def __init__(s,A,nmat): s.A=A; s.nmat=nmat; s.wb=20480 if nmat==2 else 12288
    def LW(s,buf): return s.LWB+buf*s.wb
    def setup(s, pitches):
        A=s.A
        A(f'''
        v_lshrrev_b32 v14, 3, v0
        v_mul_u32_u24 v14, 1280, v14
        v_and_b32 v15, 7, v0
        v_lshrrev_b32 v16, 4, v0
        v_xor_b32 v17, v15, v16
        v_lshl_add_u32 v{s.vXd}, v17, 4, v14
        v_xor_b32 v17, 4, v17
        v_lshl_add_u32 v{s.vXd+1}, v17, 4, v14
        s_lshl_b32 s41, s{sW}, 12
        v_and_b32 v14, 15, v0
        v_lshlrev_b32 v15, 7, v14
        v_add_u32 v15, s41, v15
        v_lshrrev_b32 v16, 1, v14
        v_lshrrev_b32 v17, 4, v0             ; g
        v_xor_b32 v16, v16, v17
        v_lshl_add_u32 v{s.vXr}, v16, 4, v15
        v_xor_b32 v16, 4, v16
        v_lshl_add_u32 v{s.vXr+1}, v16, 4, v15
        v_bfe_u32 v14, v0, 2, 2
        v_lshl_add_u32 v14, v17, 3, v14
        v_mul_u32_u24 v14, 160, v14
        v_and_b32 v15, 3, v0
        v_mul_u32_u24 v15, 40, v15
        v_add_u32 v14, v14, v15
        v_add_u32 v{s.vWr}, {s.LWB}, v14
        ''')
        per=s.nmat*10//4 if s.nmat==2 else 3
        s.per=per
        if s.nmat==2:
            A(f's_and_b32 s42, s{sW}, 1'); A('s_mul_i32 s42, s42, 5')
            A(f's_lshr_b32 s43, s{sW}, 1')
            A(f's_mul_i32 s43, s43, {pitches[1]-pitches[0]}'); A(f's_add_u32 s43, s43, {pitches[0]}')
        else:
            A(f's_mul_i32 s42, s{sW}, 3'); A(f's_mov_b32 s43, {pitches[0]}')
        for j in range(per):
            A(f'''
            s_add_u32 s44, s42, {j}
            s_lshl_b32 s44, s44, 6
            v_add_u32 v14, s44, v0
            v_mul_u32_u24 v15, 6554, v14
            v_lshrrev_b32 v15, 16, v15
            v_mul_u32_u24 v16, 10, v15
            v_sub_u32 v16, v14, v16             ; c
            v_mul_lo_u32 v15, v15, s43
            v_lshl_add_u32 v{s.vWd+j}, v16, 4, v15
            ''')
        A(f's_mul_i32 s45, s{sW}, {4*8*1280}')
        for j in range(4): A(f's_add_u32 s{46+j}, s45, {j*8*1280}')
        A(f's_lshl_b32 s50, s{sW}, 12')
        if s.nmat==2:
            A(f's_lshr_b32 s51, s{sW}, 1'); A('s_mul_i32 s51, s51, 10240'); A('s_lshl_b32 s44, s42, 10'); A('s_add_u32 s51, s51, s44')
        else:
            A('s_lshl_b32 s51, s42, 10')
    def dma(s,buf,sX,sWt,wsrd):
        out=[]
        for j in range(4):
            out.append([f's_add_u32 s44, s{sX}, s{46+j}', f's_add_u32 m0, s50, {s.LX[buf]+j*1024}', f'buffer_load_dwordx4 v{s.vXd+(j&1)}, s[{S_A}:{S_A+3}], s44 offen lds'])
        for j in range(s.per):
            out.append([f's_add_u32 m0, s51, {s.LW(buf)+j*1024}', f'buffer_load_dwordx4 v{s.vWd+j}, s[{wsrd}:{wsrd+3}], s{sWt} offen sc1 lds'])
        return out
    def compute(s,buf,fill,first):
        A=s.A; nt=5*s.nmat
        for ks in range(2):
            st=ks
            for mt in range(2):
                d=s.FX+st*8+mt*4
                A.lds(f'ds_read_b128 v[{d}:{d+3}], v{s.vXr+ks} offset:{s.LX[buf]+mt*2048}',('X',ks))
        items=[(ks,t) for ks in range(2) for t in range(nt)]
        def rd(k):
            ks,t=items[k]; m,T=divmod(t,5); d=s.FW+(k%4)*4
            for jh in range(2):
                A.lds(f'ds_read_b64_tr_b16 v[{d+2*jh}:{d+2*jh+1}], v{s.vWr} offset:{s.LW(buf)-s.LWB+m*10240+(32*ks+4*jh)*160+8*T}',('W',k))
        for k in range(3): rd(k)
        for k,(ks,t) in enumerate(items):
            if k+3<len(items): rd(k+3)
            A.wl(('X',ks)); A.wl(('W',k))
            for mt in range(2):
                acc=s.ACC+(mt*nt+t)*4
                c='0' if (first and ks==0) else f'v[{acc}:{acc+3}]'
                A(f'v_mfma_f32_16x16x32_bf16 v[{acc}:{acc+3}], v[{s.FW+(k%4)*4}:{s.FW+(k%4)*4+3}], v[{s.FX+ks*8+mt*4}:{s.FX+ks*8+mt*4+3}], {c}')
            if fill and k%2==1:
                for x in fill.pop(0): A(x)
        while fill:
            for x in fill.pop(0): A(x)

def softmax20(A, x, out, tmp, neg):
    m,l,t=tmp
    op='v_min3_f32' if neg else 'v_max3_f32'
    A(f'{op} v{m}, v{x[0]}, v{x[1]}, v{x[2]}')
    A(f'{op} v{t}, v{x[3]}, v{x[4]}, v{x[5]}')
    for i in range(6,20,4):
        A(f'{op} v{m}, v{m}, v{x[i]}, v{x[i+1]}')
        if i+3<20: A(f'{op} v{t}, v{t}, v{x[i+2]}, v{x[i+3]}')
    A(f'{"v_min_f32" if neg else "v_max_f32"} v{m}, v{m}, v{t}')
    A(f'v_mul_f32 v{m}, s60, v{m}')
    for i in range(20):
        if neg: A(f'v_fma_f32 v{out[i]}, -v{x[i]}, s60, v{m}')
        else: A(f'v_fma_f32 v{out[i]}, v{x[i]}, s60, -v{m}')
    for i in range(20): A(f'v_exp_f32 v{out[i]}, v{out[i]}')
    A('s_nop 0')
    A(f'v_add_f32 v{l}, v{out[0]}, v{out[1]}')
    A(f'v_add_f32 v{t}, v{out[2]}, v{out[3]}')
    for i in range(4,20,2):
        A(f'v_add_f32 v{l}, v{l}, v{out[i]}'); A(f'v_add_f32 v{t}, v{t}, v{out[i+1]}')
    A(f'v_add_f32 v{l}, v{l}, v{t}')
    A(f'v_rcp_f32 v{l}, v{l}')
    A('s_nop 0')
    for i in range(20): A(f'v_mul_f32 v{out[i]}, v{out[i]}, v{l}')

def gemm_loop(A,g,wsrd,wadv):
    def adv(): return [[f's_add_u32 s30, s30, 128', f's_add_u32 s31, s31, s{wadv}']]
    n=4+g.per
    for k in range(2):
        for grp in g.dma(k,30,31,wsrd):
            for x in grp: A(x)
        for x in adv()[0]: A(x)
    for k in range(10):
        A(f's_waitcnt vmcnt({n if k<9 else 0})')
        A('s_barrier')
        fill=[]
        if k+2<10: fill=g.dma((k+2)%3,30,31,wsrd)+adv()
        A.lq=[]
        g.compute(k%3,fill,k==0)

def job_a1(A, name='JA1', endlabel='L_end'):
    g=G16(A,2)
    A(f'{name}:')
    A(f'''
    s_lshr_b32 s24, s{sJ}, 3
    s_and_b32 s25, s{sJ}, 7
    s_mov_b32 s60, 0x3fb8aa3b
    ''')
    srd(A,S_A,P_X,P_X+1,2048*640*2)
    A(f'''
    s_mul_i32 s26, s25, 160
    s_cmp_lt_u32 s{sW}, 2
    s_cbranch_scc0 {name}_wv
    s_add_u32 s28, s4, {WC_OFF}
    s_addc_u32 s29, s5, 0
    s_mov_b32 s{S_W}, s28
    s_and_b32 s{S_W+1}, s29, 0xffff
    s_mov_b32 s{S_W+2}, {640*2560}
    s_mov_b32 s{S_W+3}, 0x20000
    s_add_u32 s31, s26, 1280
    s_mov_b32 s61, {64*2560}
    s_branch {name}_wd
    {name}_wv:
    s_mov_b32 s{S_W}, s{P_WQKV}
    s_and_b32 s{S_W+1}, s{P_WQKV+1}, 0xffff
    s_mov_b32 s{S_W+2}, {640*3840}
    s_mov_b32 s{S_W+3}, 0x20000
    s_add_u32 s31, s26, 2560
    s_mov_b32 s61, {64*3840}
    {name}_wd:
    ''')
    g.setup([2560,3840])
    A(f's_mul_i32 s30, s24, {128*1280}')
    gemm_loop(A,g,S_W,61)
    A('s_nop 7')
    A('s_barrier')
    PHI=0; VV=49152
    A(f'''
    v_and_b32 v14, 15, v0
    v_lshrrev_b32 v15, 4, v0
    s_lshl_b32 s26, s{sW}, 5
    v_add_u32 v14, s26, v14
    v_mul_u32_u24 v16, 384, v14
    v_mul_u32_u24 v17, 96, v15
    v_add_u32 v2, v16, v17
    v_lshlrev_b32 v16, 8, v14
    v_lshl_add_u32 v3, v15, 6, v16         ; v addr
    v_mov_b32 v4, 0x3f80                   ; (1.0, 0)
    ''')
    for mt in range(2):
        pk=[g.ACC+(mt*10+T)*4+r for T in range(5) for r in range(4)]
        vv=[g.ACC+(mt*10+5+T)*4+r for T in range(5) for r in range(4)]
        E=list(range(20,40))
        for neg in (False,True):
            softmax20(A,pk,E,(5,6,7),neg)
            for i in range(10): A(f'v_cvt_pk_bf16_f32 v{40+i}, v{E[2*i]}, v{E[2*i+1]}')
            for i in range(5): A(f'ds_write_b64 v2, v[{40+2*i}:{41+2*i}] offset:{PHI+mt*16*384+(40 if neg else 0)+8*i}')
        for i in range(10): A(f'v_cvt_pk_bf16_f32 v{50+i}, v{vv[2*i]}, v{vv[2*i+1]}')
        for i in range(5): A(f'ds_write_b64 v3, v[{50+2*i}:{51+2*i}] offset:{VV+mt*16*256+8*i}')
        A(f'ds_write_b32 v3, v4 offset:{VV+mt*16*256+40}')
    A('s_waitcnt lgkmcnt(0)')
    A('s_barrier')
    A(f'''
    v_lshrrev_b32 v14, 4, v0
    v_bfe_u32 v15, v0, 2, 2
    v_lshl_add_u32 v14, v14, 3, v15        ; 8g + r
    v_and_b32 v15, 3, v0
    v_mul_u32_u24 v16, 384, v14
    s_mul_i32 s26, s{sW}, 96
    v_lshl_add_u32 v16, v15, 3, v16
    v_add_u32 v5, s26, v16
    v_lshlrev_b32 v16, 8, v14
    s_lshl_b32 s26, s{sW}, 6
    v_lshl_add_u32 v16, v15, 3, v16
    v_add_u32 v6, s26, v16
    v_add_u32 v6, {VV}, v6
    ''')
    KA=64
    for ks in range(4):
        for ft in range(3):
            for jh in range(2): A(f'ds_read_b64_tr_b16 v[{20+4*ft+2*jh}:{21+4*ft+2*jh}], v5 offset:{(32*ks+4*jh)*384+32*ft}')
        for dt in range(2):
            for jh in range(2): A(f'ds_read_b64_tr_b16 v[{32+4*dt+2*jh}:{33+4*dt+2*jh}], v6 offset:{(32*ks+4*jh)*256+32*dt}')
        A('s_waitcnt lgkmcnt(0)')
        for ft in range(3):
            for dt in range(2):
                acc=KA+(ft*2+dt)*4
                c='0' if ks==0 else f'v[{acc}:{acc+3}]'
                A(f'v_mfma_f32_16x16x32_bf16 v[{acc}:{acc+3}], v[{20+4*ft}:{23+4*ft}], v[{32+4*dt}:{35+4*dt}], {c}')
    A('s_nop 7')
    A(f'''
    s_lshl_b32 s26, s24, 5
    s_lshl_b32 s27, s25, 2
    s_add_u32 s26, s26, s27
    s_add_u32 s26, s26, s{sW}
    s_mul_i32 s26, s26, 6144
    s_add_u32 s26, s26, {KVP_OFF}
    v_lshrrev_b32 v14, 4, v0
    v_lshlrev_b32 v14, 9, v14              ; 4g*128
    v_and_b32 v15, 15, v0
    v_lshl_add_u32 v14, v15, 2, v14
    ''')
    for ft in range(3):
        for dt in range(2):
            for r in range(4):
                o=ft*2048+r*128+dt*64
                if o>=4096:
                    A(f's_add_u32 s27, s26, 4096'); A(f'buffer_store_dword v{KA+(ft*2+dt)*4+r}, v14, s[{S_WS}:{S_WS+3}], s27 offen offset:{o-4096} sc1')
                else: A(f'buffer_store_dword v{KA+(ft*2+dt)*4+r}, v14, s[{S_WS}:{S_WS+3}], s26 offen offset:{o} sc1')
    A(f's_branch {endlabel}')

def job_kvred(A, name='JKVR', endlabel='L_end'):
    A(f'{name}:')
    A(f'''
    s_lshl_b32 s26, s{sW}, 6
    v_add_u32 v1, s26, v0
    v_mul_u32_u24 v2, 10923, v1
    v_lshrrev_b32 v2, 16, v2               ; f = t/6
    v_mul_u32_u24 v3, 6, v2
    v_sub_u32 v3, v1, v3                   ; dq
    v_lshlrev_b32 v4, 7, v2
    v_lshl_add_u32 v4, v3, 4, v4           ; f*128 + dq*16
    s_mul_i32 s27, s{sJ}, 6144
    s_add_u32 s27, s27, {KVP_OFF}
    v_cmp_gt_u32 vcc, 240, v1
    s_and_saveexec_b64 s[28:29], vcc
    s_cbranch_execz {name}_done
    ''')
    for tb in range(16):
        A(f'buffer_load_dwordx4 v[{10+4*tb}:{13+4*tb}], v4, s[{S_WS}:{S_WS+3}], s27 offen sc1')
        A(f's_add_u32 s27, s27, {32*6144}')
    A('s_waitcnt vmcnt(0)')
    for tb in range(1,16):
        for r in range(4): A(f'v_add_f32 v{10+r}, v{10+r}, v{10+4*tb+r}')
    A(f'''
    v_cvt_pk_bf16_f32 v10, v10, v11
    v_cvt_pk_bf16_f32 v11, v12, v13
    v_mul_u32_u24 v5, 320, v3
    v_lshl_add_u32 v5, v2, 1, v5
    s_lshl_b32 s27, s{sJ}, 11
    s_add_u32 s27, s27, {KVF_OFF}
    buffer_store_short v10, v5, s[{S_WS}:{S_WS+3}], s27 offen sc1
    buffer_store_short_d16_hi v10, v5, s[{S_WS}:{S_WS+3}], s27 offen offset:80 sc1
    buffer_store_short v11, v5, s[{S_WS}:{S_WS+3}], s27 offen offset:160 sc1
    buffer_store_short_d16_hi v11, v5, s[{S_WS}:{S_WS+3}], s27 offen offset:240 sc1
    {name}_done:
    s_mov_b64 exec, s[28:29]
    s_branch {endlabel}
    ''')

def job_a2(A, name='JA2', endlabel='L_end'):
    g=G16(A,1)
    A(f'{name}:')
    A(f'''
    s_lshr_b32 s24, s{sJ}, 3
    s_and_b32 s25, s{sJ}, 7
    s_mov_b32 s60, 0x3fb8aa3b
    s_add_u32 s28, s4, {WC_OFF}
    s_addc_u32 s29, s5, 0
    s_mov_b32 s{S_W}, s28
    s_and_b32 s{S_W+1}, s29, 0xffff
    s_mov_b32 s{S_W+2}, {640*2560}
    s_mov_b32 s{S_W+3}, 0x20000
    s_mul_i32 s31, s25, 160
    s_mov_b32 s61, {64*2560}
    ''')
    srd(A,S_A,P_X,P_X+1,2048*640*2)
    g.setup([2560])
    A(f's_mul_i32 s30, s24, {128*1280}')
    gemm_loop(A,g,S_W,61)
    A('s_nop 7')
    A(f'''
    v_lshrrev_b32 v14, 4, v0               ; g
    v_bfe_u32 v15, v0, 2, 2                ; i>>2
    v_cmp_eq_u32 vcc, v14, v15
    s_nop 4
    s_mov_b64 s[62:63], vcc
    v_and_b32 v16, 3, v0
    v_mul_u32_u24 v16, 80, v16
    v_lshl_add_u32 v2, v14, 11, v16
    s_lshl_b32 s26, s25, 13
    s_add_u32 s26, s26, {KVF_OFF}
    v_and_b32 v15, 15, v0
    s_lshl_b32 s27, s24, 7
    s_lshl_b32 s28, s{sW}, 5
    s_add_u32 s27, s27, s28
    v_add_u32 v15, s27, v15
    v_lshlrev_b32 v3, 2, v15
    s_mov_b32 s28, {G_OFF}
    buffer_load_dword v8, v3, s[{S_WS}:{S_WS+3}], s28 offen sc1
    buffer_load_dword v9, v3, s[{S_WS}:{S_WS+3}], s28 offen offset:64 sc1
    s_mov_b32 s29, {OM_PITCH}
    v_mul_lo_u32 v4, v15, s29
    v_mul_u32_u24 v16, 40, v14
    v_add_u32 v4, v4, v16
    s_mul_i32 s29, s25, 160
    s_add_u32 s29, s29, {OM_OFF}
    ''')
    PB=104
    for mt in range(2):
        pq=[g.ACC+(mt*5+T)*4+r for T in range(5) for r in range(4)]
        E=list(range(20,40))
        for neg in (False,True):
            softmax20(A,pq,E,(5,6,7),neg)
            for i in range(10): A(f'v_cvt_pk_bf16_f32 v{PB+mt*20+(10 if neg else 0)+i}, v{E[2*i]}, v{E[2*i+1]}')
    NA=144
    KF=20
    for Tp in range(6):
        for sidx in range(5):
            for r in range(4): A(f'v_mov_b32 v{KF+4*sidx+r}, 0')
        A('s_mov_b64 exec, s[62:63]')
        for sidx in range(5):
            A(f'buffer_load_dwordx4 v[{KF+4*sidx}:{KF+4*sidx+3}], v2, s[{S_WS}:{S_WS+3}], s26 offen offset:{Tp*320+16*sidx} sc1')
        A('s_mov_b64 exec, -1')
        A('s_waitcnt vmcnt(0)')
        for mt in range(2):
            acc=NA+mt*24+Tp*4
            for sidx in range(5):
                c='0' if sidx==0 else f'v[{acc}:{acc+3}]'
                A(f'v_mfma_f32_16x16x32_bf16 v[{acc}:{acc+3}], v[{KF+4*sidx}:{KF+4*sidx+3}], v[{PB+mt*20+4*sidx}:{PB+mt*20+4*sidx+3}], {c}')
        A('s_nop 3')
    A('s_nop 7')
    for mt in range(2):
        den=NA+mt*24+20
        A(f'v_add_f32 v5, 0x358637bd, v{den}')
        A('v_rcp_f32 v5, v5')
        A('s_nop 0')
        A(f'v_mul_f32 v5, v5, v{8+mt}')
        for i in range(20): A(f'v_mul_f32 v{NA+mt*24+i}, v{NA+mt*24+i}, v5')
        for i in range(10): A(f'v_cvt_pk_bf16_f32 v{40+i}, v{NA+mt*24+2*i}, v{NA+mt*24+2*i+1}')
        if mt==1: A(f's_add_u32 s29, s29, {16*OM_PITCH}')
        for i in range(5): A(f'buffer_store_dwordx2 v[{40+2*i}:{41+2*i}], v4, s[{S_WS}:{S_WS+3}], s29 offen offset:{8*i} sc1')
        A('s_nop 1')
    A(f's_branch {endlabel}')
```

```python
from asmlib import *
from layout import *
import layout

from gemm import *

def job_c(A, name='JC', endlabel='L_end'):
    A(f'{name}:')
    A(f'''
    s_lshl_b32 s24, s{sJ}, 2
    s_add_u32 s24, s24, s{sW}            ; task
    s_lshr_b32 s25, s24, 5               ; seg
    s_and_b32 s26, s24, 31               ; head
    s_lshl_b32 s27, s24, 13              ; task*8192
    s_lshl_b32 s28, s24, 11              ; task*2048
    s_add_u32 s29, s27, {QX_OFF}
    s_add_u32 s30, s27, {KX_OFF}
    s_add_u32 s31, s27, {VX_OFF}
    s_add_u32 s32, s28, {KM_OFF}
    s_add_u32 s33, s28, {VM_OFF}
    v_lshlrev_b32 v1, 4, v0              ; lane*16
    v_lshrrev_b32 v2, 4, v0              ; g
    v_and_b32 v3, 15, v0                 ; n / i
    ''')
    WSd=f's[{S_WS}:{S_WS+3}]'
    QF=16
    KF=48
    KM=80
    VF=96
    VM=128
    def big(off): return off
    for U in range(2):
        A(f's_add_u32 s34, s29, {U*4096}')
        for ks in range(4): A(f'buffer_load_dwordx4 v[{QF+(U*4+ks)*4}:{QF+(U*4+ks)*4+3}], v1, {WSd}, s34 offen offset:{ks*1024} sc1')
    for T in range(2):
        A(f's_add_u32 s34, s30, {T*4096}')
        for ks in range(4): A(f'buffer_load_dwordx4 v[{KF+(T*4+ks)*4}:{KF+(T*4+ks)*4+3}], v1, {WSd}, s34 offen offset:{ks*1024} sc1')
    A(f'''
    v_and_b32 v4, 7, v3
    v_lshlrev_b32 v4, 8, v4
    v_lshl_add_u32 v4, v2, 4, v4
    ''')
    for ks in range(4): A(f'buffer_load_dwordx4 v[{KM+ks*4}:{KM+ks*4+3}], v4, {WSd}, s32 offen offset:{ks*64} sc1')
    for h in range(2):
        A(f's_add_u32 s34, s31, {h*4096}')
        for t in range(4): A(f'buffer_load_dwordx4 v[{VF+(h*4+t)*4}:{VF+(h*4+t)*4+3}], v1, {WSd}, s34 offen offset:{t*1024} sc1')
    for r in range(VM,VM+32,2): A(f'v_mov_b64 v[{r}:{r+1}], 0')
    A(f'''
    v_lshlrev_b32 v5, 4, v3
    v_lshl_add_u32 v5, v2, 3, v5
    s_mov_b32 exec_hi, 0
    ''')
    for t in range(8): A(f'buffer_load_dwordx2 v[{VM+t*4}:{VM+t*4+1}], v5, {WSd}, s33 offen offset:{t*256} sc1')
    A('s_mov_b64 exec, -1')
    A(f'''
    v_lshrrev_b32 v6, 1, v2
    v_lshlrev_b32 v6, 4, v6
    v_and_b32 v7, 1, v2
    v_lshl_add_u32 v6, v7, 2, v6
    v_lshrrev_b32 v7, 3, v3
    v_lshlrev_b32 v7, 4, v7
    v_bfe_u32 v8, v3, 2, 1
    v_lshl_add_u32 v7, v8, 2, v7
    v_and_b32 v8, 3, v3
    v_add_u32 v7, v7, v8
    v_sub_u32 v8, v7, v6
    s_lshl_b32 s34, s25, 5
    v_add_u32 v9, s34, v7
    v_lshlrev_b32 v10, 2, v9
    s_mov_b32 s35, {G_OFF}
    buffer_load_dword v11, v10, {WSd}, s35 offen sc1
    buffer_load_dword v12, v10, {WSd}, s35 offen offset:32 sc1
    s_mov_b32 s60, 0x3e0293ee
    s_mov_b32 s61, 0xff800000             ; -inf
    s_waitcnt vmcnt(0)
    ''')
    S=160
    for U in range(2):
        for T in range(3):
            acc=S+(U*3+T)*4
            for ks in range(4):
                a=(KF+(T*4+ks)*4) if T<2 else KM+ks*4
                c='0' if ks==0 else f'v[{acc}:{acc+3}]'
                A(f'v_mfma_f32_16x16x32_bf16 v[{acc}:{acc+3}], v[{a}:{a+3}], v[{QF+(U*4+ks)*4}:{QF+(U*4+ks)*4+3}], {c}')
    A('s_nop 7')
    A('v_cmp_gt_u32 s[62:63], 2, v2')
    P=184
    ON=200
    for r in range(4): A(f'v_mov_b32 v{ON+r}, 0x3f803f80')
    for U in range(2):
        sx=[S+(U*3+T)*4+r for T in range(2) for r in range(4)]
        sm=[S+(U*3+2)*4+r for r in range(4)]
        for T in range(2):
            for r in range(4):
                A(f'v_cmp_le_i32 vcc, {8*T+r-8*U}, v8')
                A('s_nop 1') if False else None
                A(f'v_mov_b32 v13, s61')
                A('s_nop 0')
                A(f'v_cndmask_b32 v{sx[T*4+r]}, v13, v{sx[T*4+r]}, vcc')
        for r in range(4):
            A(f'v_mov_b32 v13, s61')
            A(f'v_cndmask_b32_e64 v{sm[r]}, v13, v{sm[r]}, s[62:63]')
        al=sx+sm
        A(f'v_max3_f32 v13, v{al[0]}, v{al[1]}, v{al[2]}')
        A(f'v_max3_f32 v14, v{al[3]}, v{al[4]}, v{al[5]}')
        A(f'v_max3_f32 v13, v13, v{al[6]}, v{al[7]}')
        A(f'v_max3_f32 v14, v14, v{al[8]}, v{al[9]}')
        A(f'v_max3_f32 v13, v13, v{al[10]}, v{al[11]}')
        A('v_max_f32 v13, v13, v14')
        for sw in ('32','16'):
            A('v_mov_b32 v14, v13'); A('s_nop 1'); A(f'v_permlane{sw}_swap_b32 v13, v14'); A('v_max_f32 v13, v13, v14')
        A('v_mul_f32 v13, s60, v13')
        for r in al: A(f'v_fma_f32 v{r}, v{r}, s60, -v13')
        for r in al: A(f'v_exp_f32 v{r}, v{r}')
        A('s_nop 0')
        for i in range(4): A(f'v_cvt_pk_bf16_f32 v{P+U*8+i}, v{sx[2*i]}, v{sx[2*i+1]}')
        for i in range(2): A(f'v_cvt_pk_bf16_f32 v{P+U*8+4+i}, v{sm[2*i]}, v{sm[2*i+1]}')
        A(f'v_mov_b64 v[{P+U*8+6}:{P+U*8+7}], 0')
    O=208
    L=160
    A('s_nop 1')
    for U in range(2):
        acc=L+U*4
        A(f'v_mfma_f32_16x16x32_bf16 v[{acc}:{acc+3}], v[{ON}:{ON+3}], v[{P+U*8}:{P+U*8+3}], 0')
        A(f'v_mfma_f32_16x16x32_bf16 v[{acc}:{acc+3}], v[{ON}:{ON+3}], v[{P+U*8+4}:{P+U*8+7}], v[{acc}:{acc+3}]')
    A(f'''
    s_mov_b32 s34, {OM_PITCH}
    v_mul_lo_u32 v10, v9, s34
    v_lshl_add_u32 v10, v2, 4, v10
    s_lshl_b32 s35, s26, 8
    s_add_u32 s35, s35, {OM_OFF+1280}
    ''')
    for U in range(2):
        OA=16 if U==0 else 208
        for t in range(8):
            acc=OA+t*4
            A(f'v_mfma_f32_16x16x32_bf16 v[{acc}:{acc+3}], v[{VF+t*4}:{VF+t*4+3}], v[{P+U*8}:{P+U*8+3}], 0')
        for t in range(8):
            acc=OA+t*4
            A(f'v_mfma_f32_16x16x32_bf16 v[{acc}:{acc+3}], v[{VM+t*4}:{VM+t*4+3}], v[{P+U*8+4}:{P+U*8+7}], v[{acc}:{acc+3}]')
    A('s_nop 7')
    for U in range(2):
        OA=16 if U==0 else 208
        A(f'v_rcp_f32 v13, v{L+U*4}')
        A(f'v_sub_f32 v14, 1.0, v{11+U}')
        A(f'v_mul_f32 v13, v13, v14')
        for r in range(32): A(f'v_mul_f32 v{OA+r}, v{OA+r}, v13')
        if U==1: A(f's_add_u32 s35, s35, {8*OM_PITCH}')
        for a in range(4):
            d=48+a*4
            A(f'v_cvt_pk_bf16_f32 v{d}, v{OA+8*a}, v{OA+8*a+1}')
            A(f'v_cvt_pk_bf16_f32 v{d+1}, v{OA+8*a+2}, v{OA+8*a+3}')
            A(f'v_cvt_pk_bf16_f32 v{d+2}, v{OA+8*a+4}, v{OA+8*a+5}')
            A(f'v_cvt_pk_bf16_f32 v{d+3}, v{OA+8*a+6}, v{OA+8*a+7}')
            A(f'buffer_store_dwordx4 v[{d}:{d+3}], v10, {WSd}, s35 offen offset:{a*64} sc1')
        A('s_nop 1')
    A(f's_branch {endlabel}')

class GO:
    LW=[0,16384,32768]; LA=[49152,57344,65536]
    vAd=2; vWd=4; vWd2=6; vAr=8; vBr=12; FA=16; FB=24; ACC=64
    def __init__(s,A): s.A=A
    def setup(s):
        A=s.A
        A(f'''
        v_lshrrev_b32 v40, 3, v0
        s_mov_b32 s40, {OM_PITCH}
        v_mul_lo_u32 v40, v40, s40
        v_and_b32 v41, 7, v0
        v_lshrrev_b32 v42, 4, v0
        v_xor_b32 v43, v41, v42
        v_lshl_add_u32 v{s.vAd}, v43, 4, v40
        v_xor_b32 v43, 4, v43
        v_lshl_add_u32 v{s.vAd+1}, v43, 4, v40
        v_lshrrev_b32 v40, 4, v0             ; row&3
        v_and_b32 v41, 15, v0
        v_lshlrev_b32 v42, 2, v40
        v_xor_b32 v43, v41, v42
        v_mul_u32_u24 v44, 1280, v40
        v_lshl_add_u32 v{s.vWd}, v43, 4, v44
        s_and_b32 s41, s{sW}, 1
        s_lshl_b32 s41, s41, 12              ; 32 rows*128
        s_add_u32 s41, s41, {s.LA[0]}
        v_and_b32 v40, 31, v0
        v_lshlrev_b32 v41, 7, v40
        v_add_u32 v41, s41, v41
        v_lshrrev_b32 v42, 1, v40
        v_and_b32 v42, 7, v42
        v_lshrrev_b32 v43, 5, v0
        v_xor_b32 v42, v42, v43
        ''')
        for ks in range(4):
            A(f'v_xor_b32 v43, {2*ks}, v42'); A(f'v_lshl_add_u32 v{s.vAr+ks}, v43, 4, v41')
        A(f'''
        v_bfe_u32 v40, v0, 2, 2              ; r
        v_lshrrev_b32 v41, 5, v0
        v_lshlrev_b32 v41, 3, v41
        v_add_u32 v41, v41, v40
        v_lshlrev_b32 v41, 8, v41            ; *256
        v_bfe_u32 v42, v0, 4, 1
        v_lshl_add_u32 v41, v42, 5, v41
        v_and_b32 v42, 3, v0
        v_lshl_add_u32 v41, v42, 3, v41
        s_lshr_b32 s41, s{sW}, 1
        s_lshl_b32 s41, s41, 1               ; 2wn
        ''')
        for nt in range(2):
            A(f's_add_u32 s42, s41, {nt}'); A(f'v_xor_b32 v42, s42, v40'); A(f'v_lshl_add_u32 v{s.vBr+nt}, v42, 6, v41')
        A(f's_mul_i32 s45, s{sW}, {16*OM_PITCH}')
        A(f's_mov_b32 s46, s45'); A(f's_add_u32 s47, s45, {8*OM_PITCH}')
        A(f's_lshl_b32 s50, s{sW}, 11'); A(f's_lshl_b32 s51, s{sW}, 12')
        for j in range(4):
            A(f's_mul_i32 s{52+j}, s{sW}, {16*1280}'); A(f's_add_u32 s{52+j}, s{52+j}, {4*j*1280}')
            A(f's_lshr_b32 s44, s{sW}, 1'); A('s_lshl_b32 s44, s44, 5')
            A(f's_and_b32 s43, s{sW}, 1'); A('s_lshl_b32 s43, s43, 3')
            A('s_add_u32 s44, s44, s43'); A(f's_add_u32 s44, s44, {16*(j&1)+4*(j>>1)}')
            A(f's_mul_i32 s{56+j}, s44, 1280')
    def dma(s,buf,partB):
        out=[]
        for j in range(2):
            out.append([f's_add_u32 s44, s30, s{46+j}', f's_add_u32 m0, s50, {s.LA[buf]+j*1024}', f'buffer_load_dwordx4 v{s.vAd+j}, s[{S_WS}:{S_WS+3}], s44 offen sc1 lds'])
        for j in range(4):
            out.append([f's_add_u32 s44, s31, s{(56 if partB else 52)+j}', f's_add_u32 m0, s51, {s.LW[buf]+j*1024}', f'buffer_load_dwordx4 v{s.vWd}, s[{S_W}:{S_W+3}], s44 offen lds'])
        return out
    def compute(s,buf,fill,first):
        A=s.A
        def rd(ks,st):
            d=s.FA+st*4
            A.lds(f'ds_read_b128 v[{d}:{d+3}], v{s.vAr+ks} offset:{s.LA[buf]-s.LA[0]}',('A',ks))
            for nt in range(2):
                d=s.FB+st*8+nt*4
                for jh in range(2):
                    A.lds(f'ds_read_b64_tr_b16 v[{d+2*jh}:{d+2*jh+1}], v{s.vBr+nt} offset:{s.LW[buf]+(16*ks+4*jh)*256}',('A',ks))
        rd(0,0)
        for ks in range(4):
            st=ks&1
            if ks<3: rd(ks+1,st^1)
            A.wl(('A',ks))
            for nt in range(2):
                acc=s.ACC+nt*16
                c='0' if (first and ks==0) else f'v[{acc}:{acc+15}]'
                A(f'v_mfma_f32_32x32x16_bf16 v[{acc}:{acc+15}], v[{s.FA+st*4}:{s.FA+st*4+3}], v[{s.FB+st*8+nt*4}:{s.FB+st*8+nt*4+3}], {c}')
                if fill:
                    for x in fill.pop(0): A(x)
        while fill:
            for x in fill.pop(0): A(x)

def job_o(A, name='JO', endlabel='L_end'):
    g=GO(A)
    A(f'{name}:')
    A(f'''
    s_mul_i32 s24, s{sJ}, 13108
    s_lshr_b32 s24, s24, 16              ; mb
    s_mul_i32 s25, s24, 5
    s_sub_u32 s25, s{sJ}, s25            ; nb
    ''')
    g.setup()
    A(f'''
    s_mul_i32 s30, s24, {64*OM_PITCH}
    s_add_u32 s30, s30, {OM_OFF}
    s_lshl_b32 s31, s25, 8
    s_mov_b32 s62, s31
    ''')
    srd(A,S_W,P_WO_A,P_WO_A+1,640*640*2)
    NI=74
    def adv(k):
        if k==9:
            return [[f's_add_u32 s30, s30, 128', f's_mov_b32 s31, s62', f's_mov_b32 s{S_W}, s{P_WO}', f's_and_b32 s{S_W+1}, s{P_WO+1}, 0xffff', f's_mov_b32 s{S_W+2}, {4096*640*2}']]
        return [[f's_add_u32 s30, s30, 128', f's_add_u32 s31, s31, {64*1280}']]
    for k in range(2):
        for grp in g.dma(k,False):
            for x in grp: A(x)
        for x in adv(k)[0]: A(x)
    def it(k,dma_k,first=False):
        A(f's_waitcnt vmcnt({6 if dma_k is not None or k==NI-2 else 0})')
        A('s_barrier')
        fill=[]
        if dma_k is not None: fill=g.dma(dma_k%3,dma_k>=10)+adv(dma_k)
        A.lq=[]
        g.compute(k%3,fill,first)
    for k in range(12): it(k,k+2,first=(k==0))
    A('s_mov_b32 s63, 20')
    A(f'{name}_loop:')
    for k in range(12,15): it(k,k+2)
    A('s_sub_u32 s63, s63, 1'); A('s_cmp_lg_u32 s63, 0'); A(f's_cbranch_scc1 {name}_loop')
    it(72,None); it(73,None)
    A('s_nop 15'); A('s_nop 3')
    srd(A,S_A,P_OUT,P_OUT+1,2048*640*2)
    A(f'''
    v_lshrrev_b32 v40, 5, v0
    v_and_b32 v41, 31, v0
    v_mul_u32_u24 v40, {4*1280}, v40
    v_lshl_add_u32 v40, v41, 1, v40
    s_lshl_b32 s26, s24, 6
    s_and_b32 s27, s{sW}, 1
    s_lshl_b32 s27, s27, 5
    s_add_u32 s26, s26, s27              ; token0
    s_mul_i32 s26, s26, 1280
    s_lshl_b32 s27, s25, 8
    s_add_u32 s26, s26, s27
    s_lshr_b32 s27, s{sW}, 1
    s_lshl_b32 s27, s27, 7
    s_add_u32 s26, s26, s27
    ''')
    for nt in range(2):
        for r in range(0,16,2):
            acc=g.ACC+nt*16+r
            A(f'v_cvt_pk_bf16_f32 v44, v{acc}, v{acc+1}')
            row0=8*(r>>2)+(r&3)
            A(f's_add_u32 s27, s26, {row0*1280+nt*64}')
            A(f'buffer_store_short v44, v40, s[{S_A}:{S_A+3}], s27 offen')
            A(f'buffer_store_short_d16_hi v44, v40, s[{S_A}:{S_A+3}], s27 offen offset:1280')
            A('s_nop 0')
    A(f's_branch {endlabel}')
```

```python
KX_OFF   = 0x0000000
VX_OFF   = 0x1000000
QX_OFF   = 0x2000000
KM_OFF   = 0x3000000
VM_OFF   = 0x3400000
PART_OFF = 0x3800000
PART_PAR = 163840
MEM_OFF  = 0x3900000
MEM_X    = 30720
STAMP_OFF= 0x3A00000
DBGM_OFF = 0x3B00000
OM_OFF   = 0x4000000
OM_PITCH = 9472
WC_OFF   = 0x6000000
G_OFF    = 0x6200000
KVP_OFF  = 0x6300000
WS_BYTES = 268435456
KN='gated_mix__linear_kernel_hedgehog__memory_aug_recurrent_mem_tr__prompt_kernel'
KVF_OFF  = 0x6700000
FLG_OFF  = 0x6800000
F_KV=0; F_Q=16; F_PREP=32; F_A1=33; F_KVR=34; F_A2=35; F_C=51; F_N=67
PROG_OFF = FLG_OFF+0x4000
D_TICK=0; D_FLAGRDY=40; D_CHAINBAR=128; D_QUEUE=192
```

```python
import sys,os; sys.path.insert(0,'gen')
from asmlib import *
from layout import *
import gemm, jobs_a, jobs_c, chain7
from gemm import S_WS, sW, sJ
REF='gated_mix__linear_kernel_hedgehog__memory_aug_recurrent_mem_tr__prompt.s.ref'
HDR=open(REF).read().split('; Override launch geometry')[0] if os.path.exists(REF) else ''
S_D=64
sSig=68
sSeen=69
sFail=70
WS=f's[{S_WS}:{S_WS+3}]'; DB=f's[{S_D}:{S_D+3}]'

def wait_flag(A, off_reg, target, lab):
    A(f'''
    s_cmp_lg_u32 s{sW}, 0
    s_cbranch_scc1 {lab}_b
    s_mov_b32 s71, 0
    v_mov_b32 v2, 0
    {lab}_p:
    buffer_load_dword v1, v2, {WS}, s{off_reg} offen sc1
    s_waitcnt vmcnt(0)
    v_readfirstlane_b32 s96, v1
    s_add_u32 s71, s71, 1
    s_cmp_ge_u32 s71, 2000000
    s_cbranch_scc1 {lab}_b
    s_cmp_ge_u32 s96, {target}
    s_cbranch_scc1 {lab}_b
    s_sleep 4
    s_branch {lab}_p
    {lab}_b:
    s_barrier
    ''')
def ensure_flagrdy(A, lab):
    A(f'''
    s_cmp_lg_u32 s{sSeen}, 0
    s_cbranch_scc1 {lab}_d
    s_mov_b32 s71, 0
    v_mov_b32 v2, {D_FLAGRDY}
    {lab}_p:
    buffer_load_dword v1, v2, {DB}, 0 offen sc1
    s_waitcnt vmcnt(0)
    v_readfirstlane_b32 s96, v1
    s_add_u32 s71, s71, 1
    s_cmp_ge_u32 s71, 2000000
    s_cbranch_scc1 {lab}_s
    s_cmp_eq_u32 s96, 0
    s_cbranch_scc1 {lab}_p
    {lab}_s:
    s_mov_b32 s{sSeen}, 1
    {lab}_d:
    ''')

def worker(A, jobs):
    A('L_worker:')
    gemm.common_prologue(A, lane_done=True)
    A(f'''
    s_mov_b32 s{S_D}, s6
    s_and_b32 s{S_D+1}, s7, 0xffff
    s_mov_b32 s{S_D+2}, 256
    s_mov_b32 s{S_D+3}, 0x20000
    s_mov_b32 s{sSeen}, 0
    L_next:
    s_cmp_lg_u32 s{sW}, 0
    s_cbranch_scc1 L_q_b
    v_mov_b32 v1, 1
    v_mov_b32 v2, {D_QUEUE}
    s_mov_b64 exec, 1
    buffer_atomic_add v1, v2, {DB}, 0 offen sc0
    s_waitcnt vmcnt(0)
    v_mov_b32 v2, 163836
    ds_write_b32 v2, v1
    s_waitcnt lgkmcnt(0)
    s_mov_b64 exec, -1
    L_q_b:
    s_barrier
    v_mov_b32 v2, 163836
    ds_read_b32 v1, v2
    s_waitcnt lgkmcnt(0)
    v_readfirstlane_b32 s97, v1
    s_barrier
    ''')
    for (nm,cnt,setup,lab) in jobs:
        A(f's_cmp_lt_u32 s97, {cnt}')
        A(f's_cbranch_scc1 L_set_{nm}')
        A(f's_sub_u32 s97, s97, {cnt}')
    A('s_branch L_end')
    for (nm,cnt,setup,lab) in jobs:
        A(f'L_set_{nm}:')
        setup(A)
        A(f's_branch {lab}')
    A(f'''
    L_jobdone:
    s_waitcnt vmcnt(0) lgkmcnt(0)
    s_barrier
    s_cmp_lg_u32 s{sW}, 0
    s_cbranch_scc1 L_next
    ''')
    ensure_flagrdy(A,'L_fr')
    A(f'''
    v_mov_b32 v1, 1
    v_mov_b32 v2, 0
    s_mov_b64 exec, 1
    buffer_atomic_add v1, v2, {WS}, s{sSig} offen
    s_mov_b64 exec, -1
    s_branch L_next
    ''')

def fl(k): return FLG_OFF+128*k
def dep(A, k, target, lab):
    l2=lab+'_e'
    A(f's_cmp_lg_u32 s{sW}, 0'); A(f's_cbranch_scc1 {l2}')
    ensure_flagrdy(A,lab+'_fr')
    A(f'{l2}:')
    A(f's_mov_b32 s98, {fl(k)}')
    wait_flag(A,98,target,lab)

def gen(**kw):
    A=Sched()
    def s_prep(A):
        A(f's_mov_b32 s{sJ}, s97'); A(f's_mov_b32 s{sSig}, {fl(F_PREP)}')
    def s_kv(A):
        A(f'''s_lshr_b32 s24, s97, 5
        s_bfe_u32 s25, s97, 0x10004
        s_and_b32 s26, s97, 15
        s_lshl_b32 s{sJ}, s25, 8
        s_lshl_b32 s27, s24, 4
        s_add_u32 s{sJ}, s{sJ}, s27
        s_add_u32 s{sJ}, s{sJ}, s26
        s_lshl_b32 s27, s24, 7
        s_add_u32 s{sSig}, s27, {fl(F_KV)}''')
    def s_q(A):
        A(f'''s_add_u32 s{sJ}, s97, 512
        s_lshr_b32 s27, s97, 4
        s_lshl_b32 s27, s27, 7
        s_add_u32 s{sSig}, s27, {fl(F_Q)}''')
    def s_a1(A):
        dep(A,F_PREP,64,'L_da1')
        A(f's_mov_b32 s{sJ}, s97'); A(f's_mov_b32 s{sSig}, {fl(F_A1)}')
    def s_kvr(A):
        dep(A,F_A1,128,'L_dkvr')
        A(f's_mov_b32 s{sJ}, s97'); A(f's_mov_b32 s{sSig}, {fl(F_KVR)}')
    def s_a2(A):
        dep(A,F_KVR,32,'L_da2')
        A(f'''s_mov_b32 s{sJ}, s97
        s_lshr_b32 s27, s97, 3
        s_lshl_b32 s27, s27, 7
        s_add_u32 s{sSig}, s27, {fl(F_A2)}''')
    jobs=[('prep',64,s_prep,'JPREP'),('kv',512,s_kv,'JP'),('a1',128,s_a1,'JA1'),('q',256,s_q,'JP'),('kvr',32,s_kvr,'JKVR'),('a2',128,s_a2,'JA2')]
    A.raw(kernel_header('main_kernel'))
    chain7.gen_body(A, other='L_worker', merged=True, **kw)
    worker(A,jobs)
    for fn,lab in ((gemm.job_proj,'JP'),(jobs_a.job_prep,'JPREP'),(jobs_a.job_a1,'JA1'),(jobs_a.job_kvred,'JKVR'),(jobs_a.job_a2,'JA2')):
        A.lq=[]; A.vq=[]
        fn(A,name=lab,endlabel='L_jobdone')
    A.raw(kernel_desc('main_kernel'))
    main=A.text()
    import build_v1
    t2,n2=build_v1.simple_kernel('post_kernel',[(512,jobs_c.job_c,'JC')])
    t3,n3=build_v1.simple_kernel('out_kernel',[(160,jobs_c.job_o,'JO')])
    out=HDR
    out+='; @launch kernel=main_kernel grid=(256,1,1) block=(256,1,1) lds=163840\n'
    out+=f'; @launch kernel=post_kernel grid=({n2},1,1) block=(256,1,1) lds=0\n'
    out+=f'; @launch kernel=out_kernel grid=({n3},1,1) block=(256,1,1) lds=73728\n'
    out+='.amdgcn_target "amdgcn-amd-amdhsa--gfx950"\n.text\n'+main+t2+t3
    return out
if __name__=='__main__':
    open(sys.argv[1] if len(sys.argv)>1 else 'v2.s','w').write(gen())
```

```python
from asmlib import *
from layout import *
import layout

from gemm import *

def job_c(A, name='JC', endlabel='L_end', merged=False):
    A(f'{name}:')
    A(f'''
    s_lshl_b32 s24, s{sJ}, 2
    s_add_u32 s24, s24, s{sW}            ; task
    s_lshr_b32 s25, s24, 5               ; seg
    s_and_b32 s26, s24, 31               ; head
    s_lshl_b32 s27, s24, 13              ; task*8192
    s_lshl_b32 s28, s24, 11              ; task*2048
    s_add_u32 s29, s27, {QX_OFF}
    s_add_u32 s30, s27, {KX_OFF}
    s_add_u32 s31, s27, {VX_OFF}
    s_add_u32 s32, s28, {KM_OFF}
    s_add_u32 s33, s28, {VM_OFF}
    v_lshlrev_b32 v1, 4, v0              ; lane*16
    v_lshrrev_b32 v2, 4, v0              ; g
    v_and_b32 v3, 15, v0                 ; n / i
    ''')
    WSd=f's[{S_WS}:{S_WS+3}]'
    QF=16
    KF=48
    KM=80
    VF=96
    VM=128
    def big(off): return off
    for U in range(2):
        A(f's_add_u32 s34, s29, {U*4096}')
        for ks in range(4): A(f'buffer_load_dwordx4 v[{QF+(U*4+ks)*4}:{QF+(U*4+ks)*4+3}], v1, {WSd}, s34 offen offset:{ks*1024} sc1')
    for T in range(2):
        A(f's_add_u32 s34, s30, {T*4096}')
        for ks in range(4): A(f'buffer_load_dwordx4 v[{KF+(T*4+ks)*4}:{KF+(T*4+ks)*4+3}], v1, {WSd}, s34 offen offset:{ks*1024} sc1')
    for h in range(2):
        A(f's_add_u32 s34, s31, {h*4096}')
        for t in range(4): A(f'buffer_load_dwordx4 v[{VF+(h*4+t)*4}:{VF+(h*4+t)*4+3}], v1, {WSd}, s34 offen offset:{t*1024} sc1')
    for r in range(VM,VM+32,2): A(f'v_mov_b64 v[{r}:{r+1}], 0')
    if merged:
        A(f'''
        s_lshl_b32 s36, s26, 10
        s_lshl_b32 s37, s25, 4
        s_add_u32 s36, s36, s37
        s_add_u32 s36, s36, {PROG_OFF}
        s_add_u32 s37, s36, {32*1024}
        s_mov_b32 s38, 0
        v_mov_b32 v4, 0
        {name}_pw:
        buffer_load_dword v5, v4, {WSd}, s36 offen sc1
        buffer_load_dword v6, v4, {WSd}, s37 offen sc1
        s_waitcnt vmcnt(0)
        v_and_b32 v5, v5, v6
        s_nop 0
        v_readfirstlane_b32 s39, v5
        s_add_u32 s38, s38, 1
        s_cmp_ge_u32 s38, 4000000
        s_cbranch_scc1 {name}_pd
        s_cmp_lg_u32 s39, 0
        s_cbranch_scc1 {name}_pd
        s_sleep 2
        s_branch {name}_pw
        {name}_pd:
        ''')
    A(f'''
    v_and_b32 v4, 7, v3
    v_lshlrev_b32 v4, 8, v4
    v_lshl_add_u32 v4, v2, 4, v4
    ''')
    for ks in range(4): A(f'buffer_load_dwordx4 v[{KM+ks*4}:{KM+ks*4+3}], v4, {WSd}, s32 offen offset:{ks*64} sc1')
    A(f'''
    v_lshlrev_b32 v5, 4, v3
    v_lshl_add_u32 v5, v2, 3, v5
    s_mov_b32 exec_hi, 0
    ''')
    for t in range(8): A(f'buffer_load_dwordx2 v[{VM+t*4}:{VM+t*4+1}], v5, {WSd}, s33 offen offset:{t*256} sc1')
    A('s_mov_b64 exec, -1')
    A(f'''
    v_lshrrev_b32 v6, 1, v2
    v_lshlrev_b32 v6, 4, v6
    v_and_b32 v7, 1, v2
    v_lshl_add_u32 v6, v7, 2, v6
    v_lshrrev_b32 v7, 3, v3
    v_lshlrev_b32 v7, 4, v7
    v_bfe_u32 v8, v3, 2, 1
    v_lshl_add_u32 v7, v8, 2, v7
    v_and_b32 v8, 3, v3
    v_add_u32 v7, v7, v8
    v_sub_u32 v8, v7, v6
    s_lshl_b32 s34, s25, 5
    v_add_u32 v9, s34, v7
    v_lshlrev_b32 v10, 2, v9
    s_mov_b32 s35, {G_OFF}
    buffer_load_dword v11, v10, {WSd}, s35 offen sc1
    buffer_load_dword v12, v10, {WSd}, s35 offen offset:32 sc1
    s_mov_b32 s60, 0x3e0293ee
    s_mov_b32 s61, 0xff800000             ; -inf
    s_waitcnt vmcnt(0)
    ''')
    S=160
    for U in range(2):
        for T in range(3):
            acc=S+(U*3+T)*4
            for ks in range(4):
                a=(KF+(T*4+ks)*4) if T<2 else KM+ks*4
                c='0' if ks==0 else f'v[{acc}:{acc+3}]'
                A(f'v_mfma_f32_16x16x32_bf16 v[{acc}:{acc+3}], v[{a}:{a+3}], v[{QF+(U*4+ks)*4}:{QF+(U*4+ks)*4+3}], {c}')
    A('s_nop 7')
    A('v_cmp_gt_u32 s[62:63], 2, v2')
    P=184
    ON=200
    for r in range(4): A(f'v_mov_b32 v{ON+r}, 0x3f803f80')
    for U in range(2):
        sx=[S+(U*3+T)*4+r for T in range(2) for r in range(4)]
        sm=[S+(U*3+2)*4+r for r in range(4)]
        for T in range(2):
            for r in range(4):
                A(f'v_cmp_le_i32 vcc, {8*T+r-8*U}, v8')
                A('s_nop 1') if False else None
                A(f'v_mov_b32 v13, s61')
                A('s_nop 0')
                A(f'v_cndmask_b32 v{sx[T*4+r]}, v13, v{sx[T*4+r]}, vcc')
        for r in range(4):
            A(f'v_mov_b32 v13, s61')
            A(f'v_cndmask_b32_e64 v{sm[r]}, v13, v{sm[r]}, s[62:63]')
        al=sx+sm
        A(f'v_max3_f32 v13, v{al[0]}, v{al[1]}, v{al[2]}')
        A(f'v_max3_f32 v14, v{al[3]}, v{al[4]}, v{al[5]}')
        A(f'v_max3_f32 v13, v13, v{al[6]}, v{al[7]}')
        A(f'v_max3_f32 v14, v14, v{al[8]}, v{al[9]}')
        A(f'v_max3_f32 v13, v13, v{al[10]}, v{al[11]}')
        A('v_max_f32 v13, v13, v14')
        for sw in ('32','16'):
            A('v_mov_b32 v14, v13'); A('s_nop 1'); A(f'v_permlane{sw}_swap_b32 v13, v14'); A('v_max_f32 v13, v13, v14')
        A('v_mul_f32 v13, s60, v13')
        for r in al: A(f'v_fma_f32 v{r}, v{r}, s60, -v13')
        for r in al: A(f'v_exp_f32 v{r}, v{r}')
        A('s_nop 0')
        for i in range(4): A(f'v_cvt_pk_bf16_f32 v{P+U*8+i}, v{sx[2*i]}, v{sx[2*i+1]}')
        for i in range(2): A(f'v_cvt_pk_bf16_f32 v{P+U*8+4+i}, v{sm[2*i]}, v{sm[2*i+1]}')
        A(f'v_mov_b64 v[{P+U*8+6}:{P+U*8+7}], 0')
    O=208
    L=160
    A('s_nop 1')
    for U in range(2):
        acc=L+U*4
        A(f'v_mfma_f32_16x16x32_bf16 v[{acc}:{acc+3}], v[{ON}:{ON+3}], v[{P+U*8}:{P+U*8+3}], 0')
        A(f'v_mfma_f32_16x16x32_bf16 v[{acc}:{acc+3}], v[{ON}:{ON+3}], v[{P+U*8+4}:{P+U*8+7}], v[{acc}:{acc+3}]')
    A(f'''
    s_mov_b32 s34, {OM_PITCH}
    v_mul_lo_u32 v10, v9, s34
    v_lshl_add_u32 v10, v2, 4, v10
    s_lshl_b32 s35, s26, 8
    s_add_u32 s35, s35, {OM_OFF+1280}
    ''')
    for U in range(2):
        OA=16 if U==0 else 208
        for t in range(8):
            acc=OA+t*4
            A(f'v_mfma_f32_16x16x32_bf16 v[{acc}:{acc+3}], v[{VF+t*4}:{VF+t*4+3}], v[{P+U*8}:{P+U*8+3}], 0')
        for t in range(8):
            acc=OA+t*4
            A(f'v_mfma_f32_16x16x32_bf16 v[{acc}:{acc+3}], v[{VM+t*4}:{VM+t*4+3}], v[{P+U*8+4}:{P+U*8+7}], v[{acc}:{acc+3}]')
    A('s_nop 7')
    for U in range(2):
        OA=16 if U==0 else 208
        A(f'v_rcp_f32 v13, v{L+U*4}')
        A(f'v_sub_f32 v14, 1.0, v{11+U}')
        A(f'v_mul_f32 v13, v13, v14')
        for r in range(32): A(f'v_mul_f32 v{OA+r}, v{OA+r}, v13')
        if U==1: A(f's_add_u32 s35, s35, {8*OM_PITCH}')
        for a in range(4):
            d=48+a*4
            A(f'v_cvt_pk_bf16_f32 v{d}, v{OA+8*a}, v{OA+8*a+1}')
            A(f'v_cvt_pk_bf16_f32 v{d+1}, v{OA+8*a+2}, v{OA+8*a+3}')
            A(f'v_cvt_pk_bf16_f32 v{d+2}, v{OA+8*a+4}, v{OA+8*a+5}')
            A(f'v_cvt_pk_bf16_f32 v{d+3}, v{OA+8*a+6}, v{OA+8*a+7}')
            A(f'buffer_store_dwordx4 v[{d}:{d+3}], v10, {WSd}, s35 offen offset:{a*64} sc1')
        A('s_nop 1')
    A(f's_branch {endlabel}')

class GO:
    LW=[0,16384,32768]; LA=[49152,57344,65536]
    vAd=2; vWd=4; vWd2=6; vAr=8; vBr=12; FA=16; FB=24; ACC=64
    def __init__(s,A): s.A=A
    def setup(s):
        A=s.A
        A(f'''
        v_lshrrev_b32 v40, 3, v0
        s_mov_b32 s40, {OM_PITCH}
        v_mul_lo_u32 v40, v40, s40
        v_and_b32 v41, 7, v0
        v_lshrrev_b32 v42, 4, v0
        v_xor_b32 v43, v41, v42
        v_lshl_add_u32 v{s.vAd}, v43, 4, v40
        v_xor_b32 v43, 4, v43
        v_lshl_add_u32 v{s.vAd+1}, v43, 4, v40
        v_lshrrev_b32 v40, 4, v0             ; row&3
        v_and_b32 v41, 15, v0
        v_lshlrev_b32 v42, 2, v40
        v_xor_b32 v43, v41, v42
        v_mul_u32_u24 v44, 1280, v40
        v_lshl_add_u32 v{s.vWd}, v43, 4, v44
        s_and_b32 s41, s{sW}, 1
        s_lshl_b32 s41, s41, 12              ; 32 rows*128
        s_add_u32 s41, s41, {s.LA[0]}
        v_and_b32 v40, 31, v0
        v_lshlrev_b32 v41, 7, v40
        v_add_u32 v41, s41, v41
        v_lshrrev_b32 v42, 1, v40
        v_and_b32 v42, 7, v42
        v_lshrrev_b32 v43, 5, v0
        v_xor_b32 v42, v42, v43
        ''')
        for ks in range(4):
            A(f'v_xor_b32 v43, {2*ks}, v42'); A(f'v_lshl_add_u32 v{s.vAr+ks}, v43, 4, v41')
        A(f'''
        v_bfe_u32 v40, v0, 2, 2              ; r
        v_lshrrev_b32 v41, 5, v0
        v_lshlrev_b32 v41, 3, v41
        v_add_u32 v41, v41, v40
        v_lshlrev_b32 v41, 8, v41            ; *256
        v_bfe_u32 v42, v0, 4, 1
        v_lshl_add_u32 v41, v42, 5, v41
        v_and_b32 v42, 3, v0
        v_lshl_add_u32 v41, v42, 3, v41
        s_lshr_b32 s41, s{sW}, 1
        s_lshl_b32 s41, s41, 1               ; 2wn
        ''')
        for nt in range(2):
            A(f's_add_u32 s42, s41, {nt}'); A(f'v_xor_b32 v42, s42, v40'); A(f'v_lshl_add_u32 v{s.vBr+nt}, v42, 6, v41')
        A(f's_mul_i32 s45, s{sW}, {16*OM_PITCH}')
        A(f's_mov_b32 s46, s45'); A(f's_add_u32 s47, s45, {8*OM_PITCH}')
        A(f's_lshl_b32 s50, s{sW}, 11'); A(f's_lshl_b32 s51, s{sW}, 12')
        for j in range(4):
            A(f's_mul_i32 s{52+j}, s{sW}, {16*1280}'); A(f's_add_u32 s{52+j}, s{52+j}, {4*j*1280}')
            A(f's_lshr_b32 s44, s{sW}, 1'); A('s_lshl_b32 s44, s44, 5')
            A(f's_and_b32 s43, s{sW}, 1'); A('s_lshl_b32 s43, s43, 3')
            A('s_add_u32 s44, s44, s43'); A(f's_add_u32 s44, s44, {16*(j&1)+4*(j>>1)}')
            A(f's_mul_i32 s{56+j}, s44, 1280')
    def dma(s,buf,partB):
        out=[]
        for j in range(2):
            out.append([f's_add_u32 s44, s30, s{46+j}', f's_add_u32 m0, s50, {s.LA[buf]+j*1024}', f'buffer_load_dwordx4 v{s.vAd+j}, s[{S_WS}:{S_WS+3}], s44 offen sc1 lds'])
        for j in range(4):
            out.append([f's_add_u32 s44, s31, s{(56 if partB else 52)+j}', f's_add_u32 m0, s51, {s.LW[buf]+j*1024}', f'buffer_load_dwordx4 v{s.vWd}, s[{S_W}:{S_W+3}], s44 offen lds'])
        return out
    def compute(s,buf,fill,first):
        A=s.A
        def rd(ks,st):
            d=s.FA+st*4
            A.lds(f'ds_read_b128 v[{d}:{d+3}], v{s.vAr+ks} offset:{s.LA[buf]-s.LA[0]}',('A',ks))
            for nt in range(2):
                d=s.FB+st*8+nt*4
                for jh in range(2):
                    A.lds(f'ds_read_b64_tr_b16 v[{d+2*jh}:{d+2*jh+1}], v{s.vBr+nt} offset:{s.LW[buf]+(16*ks+4*jh)*256}',('A',ks))
        rd(0,0)
        for ks in range(4):
            st=ks&1
            if ks<3: rd(ks+1,st^1)
            A.wl(('A',ks))
            for nt in range(2):
                acc=s.ACC+nt*16
                c='0' if (first and ks==0) else f'v[{acc}:{acc+15}]'
                A(f'v_mfma_f32_32x32x16_bf16 v[{acc}:{acc+15}], v[{s.FA+st*4}:{s.FA+st*4+3}], v[{s.FB+st*8+nt*4}:{s.FB+st*8+nt*4+3}], {c}')
                if fill:
                    for x in fill.pop(0): A(x)
        while fill:
            for x in fill.pop(0): A(x)

def job_o(A, name='JO', endlabel='L_end'):
    g=GO(A)
    A(f'{name}:')
    A(f'''
    s_mul_i32 s24, s{sJ}, 13108
    s_lshr_b32 s24, s24, 16              ; mb
    s_mul_i32 s25, s24, 5
    s_sub_u32 s25, s{sJ}, s25            ; nb
    ''')
    g.setup()
    A(f'''
    s_mul_i32 s30, s24, {64*OM_PITCH}
    s_add_u32 s30, s30, {OM_OFF}
    s_lshl_b32 s31, s25, 8
    s_mov_b32 s62, s31
    ''')
    srd(A,S_W,P_WO_A,P_WO_A+1,640*640*2)
    NI=74
    def adv(k):
        if k==9:
            return [[f's_add_u32 s30, s30, 128', f's_mov_b32 s31, s62', f's_mov_b32 s{S_W}, s{P_WO}', f's_and_b32 s{S_W+1}, s{P_WO+1}, 0xffff', f's_mov_b32 s{S_W+2}, {4096*640*2}']]
        return [[f's_add_u32 s30, s30, 128', f's_add_u32 s31, s31, {64*1280}']]
    for k in range(2):
        for grp in g.dma(k,False):
            for x in grp: A(x)
        for x in adv(k)[0]: A(x)
    def it(k,dma_k,first=False):
        A(f's_waitcnt vmcnt({6 if dma_k is not None or k==NI-2 else 0})')
        A('s_barrier')
        fill=[]
        if dma_k is not None: fill=g.dma(dma_k%3,dma_k>=10)+adv(dma_k)
        A.lq=[]
        g.compute(k%3,fill,first)
    for k in range(12): it(k,k+2,first=(k==0))
    A('s_mov_b32 s63, 20')
    A(f'{name}_loop:')
    for k in range(12,15): it(k,k+2)
    A('s_sub_u32 s63, s63, 1'); A('s_cmp_lg_u32 s63, 0'); A(f's_cbranch_scc1 {name}_loop')
    it(72,None); it(73,None)
    A('s_nop 15'); A('s_nop 3')
    srd(A,S_A,P_OUT,P_OUT+1,2048*640*2)
    A(f'''
    v_lshrrev_b32 v40, 5, v0
    v_and_b32 v41, 31, v0
    v_mul_u32_u24 v40, {4*1280}, v40
    v_lshl_add_u32 v40, v41, 1, v40
    s_lshl_b32 s26, s24, 6
    s_and_b32 s27, s{sW}, 1
    s_lshl_b32 s27, s27, 5
    s_add_u32 s26, s26, s27              ; token0
    s_mul_i32 s26, s26, 1280
    s_lshl_b32 s27, s25, 8
    s_add_u32 s26, s26, s27
    s_lshr_b32 s27, s{sW}, 1
    s_lshl_b32 s27, s27, 7
    s_add_u32 s26, s26, s27
    ''')
    for nt in range(2):
        for r in range(0,16,2):
            acc=g.ACC+nt*16+r
            A(f'v_cvt_pk_bf16_f32 v44, v{acc}, v{acc+1}')
            row0=8*(r>>2)+(r&3)
            A(f's_add_u32 s27, s26, {row0*1280+nt*64}')
            A(f'buffer_store_short v44, v40, s[{S_A}:{S_A+3}], s27 offen')
            A(f'buffer_store_short_d16_hi v44, v40, s[{S_A}:{S_A+3}], s27 offen offset:1280')
            A('s_nop 0')
    A(f's_branch {endlabel}')


def job_os(A, name='JOS', endlabel='L_end'):
    WB=24576
    vAd=2; vWd=4; vWdP=5; vAr=8; vBr=12; FA=16; FB=24; ACC=32
    A(f'{name}:')
    A(f'''
    s_mul_i32 s24, s{sJ}, 3277
    s_lshr_b32 s24, s24, 16
    s_mul_i32 s25, s24, 20
    s_sub_u32 s25, s{sJ}, s25            ; ct
    s_mul_i32 s26, s{sW}, {WB}
    v_lshrrev_b32 v40, 3, v0
    s_mov_b32 s40, {OM_PITCH}
    v_mul_lo_u32 v40, v40, s40
    v_and_b32 v41, 7, v0
    v_lshrrev_b32 v42, 4, v0
    v_xor_b32 v43, v41, v42
    v_lshl_add_u32 v{vAd}, v43, 4, v40
    v_xor_b32 v43, 4, v43
    v_lshl_add_u32 v{vAd+1}, v43, 4, v40
    v_lshrrev_b32 v40, 2, v0             ; rr = 0..15
    v_and_b32 v41, 3, v0
    v_mul_u32_u24 v42, 1280, v40
    v_lshl_add_u32 v{vWd}, v41, 4, v42   ; natural
    v_bfe_u32 v42, v40, 2, 1
    v_lshlrev_b32 v42, 4, v42
    v_lshrrev_b32 v43, 3, v40
    v_lshl_add_u32 v42, v43, 2, v42
    v_and_b32 v43, 3, v40
    v_add_u32 v42, v42, v43
    v_mul_u32_u24 v42, 1280, v42
    v_lshl_add_u32 v{vWdP}, v41, 4, v42
    v_and_b32 v40, 31, v0
    v_lshlrev_b32 v41, 7, v40
    v_add_u32 v41, s26, v41
    v_lshrrev_b32 v42, 1, v40
    v_and_b32 v42, 7, v42
    v_lshrrev_b32 v43, 5, v0
    v_xor_b32 v42, v42, v43
    ''')
    for ks in range(4):
        A(f'v_xor_b32 v43, {2*ks}, v42'); A(f'v_lshl_add_u32 v{vAr+ks}, v43, 4, v41')
    A(f'''
    v_bfe_u32 v40, v0, 2, 2
    v_lshrrev_b32 v41, 5, v0
    v_lshlrev_b32 v41, 3, v41
    v_add_u32 v41, v41, v40
    v_lshlrev_b32 v41, 6, v41
    v_bfe_u32 v42, v0, 4, 1
    v_lshl_add_u32 v41, v42, 5, v41
    v_and_b32 v42, 3, v0
    v_lshl_add_u32 v41, v42, 3, v41
    v_add_u32 v{vBr}, s26, v41
    s_mul_i32 s30, s24, {32*OM_PITCH}
    s_add_u32 s30, s30, {OM_OFF}         ; A base (k=0)
    s_lshl_b32 s62, s25, 6
    ''')
    for r in range(16): A(f'v_mov_b32 v{ACC+r}, 0')
    def issue(stage, part):
        for j in range(4):
            A(f's_add_u32 s44, s31, {j*8*OM_PITCH}'); A(f's_add_u32 m0, s26, {stage*8192+j*1024}')
            A(f'buffer_load_dwordx4 v{vAd+(j&1)}, s[{S_WS}:{S_WS+3}], s44 offen sc1 lds')
        for j in range(4):
            off=(16*j*1280) if part==0 else (32*(j>>1)+8*(j&1))*1280
            A(f's_add_u32 s44, s33, {off}'); A(f's_add_u32 m0, s26, {stage*8192+4096+j*1024}')
            A(f'buffer_load_dwordx4 v{vWd if part==0 else vWdP}, s[{S_W}:{S_W+3}], s44 offen lds')
    def comp(stage):
        for ks in range(4):
            st=ks&1
            A(f'ds_read_b128 v[{FA+st*4}:{FA+st*4+3}], v{vAr+ks} offset:{stage*8192}')
            for jh in range(2): A(f'ds_read_b64_tr_b16 v[{FB+st*4+2*jh}:{FB+st*4+2*jh+1}], v{vBr} offset:{stage*8192+4096+(16*ks+4*jh)*64}')
            A('s_waitcnt lgkmcnt(0)')
            A(f'v_mfma_f32_32x32x16_bf16 v[{ACC}:{ACC+15}], v[{FA+st*4}:{FA+st*4+3}], v[{FB+st*4}:{FB+st*4+3}], v[{ACC}:{ACC+15}]')
    srd(A,S_W,P_WO_A,P_WO_A+1,640*640*2)
    for k in range(3):
        l=f'{name}_a{k}'
        A(f's_add_u32 s34, s{sW}, {4*k}')
        if k==2: A('s_cmp_ge_u32 s34, 10'); A(f's_cbranch_scc1 {l}')
        A('s_lshl_b32 s35, s34, 7'); A('s_add_u32 s31, s30, s35')
        A(f's_mul_i32 s35, s34, {64*1280}'); A('s_add_u32 s33, s62, s35')
        issue(k,0)
        if k==2: A(f'{l}:')
    A('s_waitcnt vmcnt(0)')
    comp(0); comp(1)
    A(f's_cmp_ge_u32 s{sW}, 2'); A(f's_cbranch_scc1 {name}_a3')
    comp(2)
    A(f'{name}_a3:')
    srd(A,S_W,P_WO,P_WO+1,4096*640*2)
    A(f'''
    s_lshl_b32 s35, s{sW}, 7
    s_add_u32 s31, s30, s35
    s_add_u32 s31, s31, 1280
    s_mul_i32 s35, s{sW}, {64*1280}
    s_add_u32 s33, s62, s35
    ''')
    def adv(): A('s_add_u32 s31, s31, 512'); A(f's_add_u32 s33, s33, {4*64*1280}')
    issue(0,1); adv(); issue(1,1); adv()
    A('s_mov_b32 s63, 4')
    A(f'{name}_loop:')
    for st in range(3):
        issue((st+2)%3,1); adv()
        A('s_waitcnt vmcnt(16)')
        comp(st)
    A('s_sub_u32 s63, s63, 1'); A('s_cmp_lg_u32 s63, 0'); A(f's_cbranch_scc1 {name}_loop')
    issue(2,1); adv(); A('s_waitcnt vmcnt(16)'); comp(0)
    issue(0,1); A('s_waitcnt vmcnt(16)'); comp(1)
    A('s_waitcnt vmcnt(8)'); comp(2)
    A('s_waitcnt vmcnt(0)'); comp(0)
    A('s_nop 15'); A('s_nop 3')
    A(f'''
    s_barrier
    s_lshl_b32 s34, s{sW}, 12
    v_lshlrev_b32 v70, 2, v0
    v_add_u32 v71, s34, v70
    v_add_u32 v71, 98304, v71
    ''')
    for r in range(16): A(f'ds_write_b32 v71, v{ACC+r} offset:{r*256}')
    A(f'''
    s_waitcnt lgkmcnt(0)
    s_barrier
    s_lshl_b32 s34, s{sW}, 10
    v_add_u32 v71, s34, v70
    v_add_u32 v71, 98304, v71
    ''')
    for ww in range(4):
        for r in range(4): A(f'ds_read_b32 v{48+ww*4+r}, v71 offset:{ww*4096+r*256}')
    A('s_waitcnt lgkmcnt(0)')
    for r in range(4):
        A(f'v_add_f32 v{48+r}, v{48+r}, v{52+r}'); A(f'v_add_f32 v{56+r}, v{56+r}, v{60+r}'); A(f'v_add_f32 v{48+r}, v{48+r}, v{56+r}')
    srd(A,S_A,P_OUT,P_OUT+1,2048*640*2)
    A(f'''
    v_cvt_pk_bf16_f32 v74, v48, v49
    v_cvt_pk_bf16_f32 v75, v50, v51
    v_lshrrev_b32 v70, 5, v0
    v_and_b32 v71, 31, v0
    v_mul_u32_u24 v70, {4*1280}, v70
    v_lshl_add_u32 v70, v71, 1, v70
    s_lshl_b32 s26, s24, 5
    s_lshl_b32 s27, s{sW}, 3
    s_add_u32 s26, s26, s27
    s_mul_i32 s26, s26, 1280
    s_add_u32 s26, s26, s62
    buffer_store_short v74, v70, s[{S_A}:{S_A+3}], s26 offen
    buffer_store_short_d16_hi v74, v70, s[{S_A}:{S_A+3}], s26 offen offset:1280
    buffer_store_short v75, v70, s[{S_A}:{S_A+3}], s26 offen offset:2560
    buffer_store_short_d16_hi v75, v70, s[{S_A}:{S_A+3}], s26 offen offset:3840
    s_branch {endlabel}
    ''')
```

```python
import sys,os; sys.path.insert(0,'gen')
from asmlib import *
from layout import *
import gemm, jobs_a, jobs_c
import importlib
chain7=importlib.import_module(os.environ.get("CHAIN","chain9"))
from gemm import S_WS, sW, sJ
REF='gated_mix__linear_kernel_hedgehog__memory_aug_recurrent_mem_tr__prompt.s.ref'
HDR=open(REF).read().split('; Override launch geometry')[0] if os.path.exists(REF) else ''
S_D=64
sSig=68
sSeen=69
sFail=70
WS=f's[{S_WS}:{S_WS+3}]'; DB=f's[{S_D}:{S_D+3}]'

def wait_flag(A, off_reg, target, lab):
    A(f'''
    s_cmp_lg_u32 s{sW}, 0
    s_cbranch_scc1 {lab}_b
    s_mov_b32 s71, 0
    v_mov_b32 v2, 0
    {lab}_p:
    buffer_load_dword v1, v2, {WS}, s{off_reg} offen sc1
    s_waitcnt vmcnt(0)
    v_readfirstlane_b32 s96, v1
    s_add_u32 s71, s71, 1
    s_cmp_ge_u32 s71, 2000000
    s_cbranch_scc1 {lab}_b
    s_cmp_ge_u32 s96, {target}
    s_cbranch_scc1 {lab}_b
    s_sleep 4
    s_branch {lab}_p
    {lab}_b:
    s_barrier
    ''')
def ensure_flagrdy(A, lab):
    A(f'''
    s_cmp_lg_u32 s{sSeen}, 0
    s_cbranch_scc1 {lab}_d
    s_mov_b32 s71, 0
    v_mov_b32 v2, {D_FLAGRDY}
    {lab}_p:
    buffer_load_dword v1, v2, {DB}, 0 offen sc1
    s_waitcnt vmcnt(0)
    v_readfirstlane_b32 s96, v1
    s_add_u32 s71, s71, 1
    s_cmp_ge_u32 s71, 2000000
    s_cbranch_scc1 {lab}_s
    s_cmp_eq_u32 s96, 0
    s_cbranch_scc1 {lab}_p
    {lab}_s:
    s_mov_b32 s{sSeen}, 1
    {lab}_d:
    ''')

def worker(A, jobs):
    A('L_worker:')
    gemm.common_prologue(A, lane_done=True)
    A(f'''
    s_mov_b32 s{S_D}, s6
    s_and_b32 s{S_D+1}, s7, 0xffff
    s_mov_b32 s{S_D+2}, 256
    s_mov_b32 s{S_D+3}, 0x20000
    s_mov_b32 s{sSeen}, 0
    L_next:
    s_cmp_lg_u32 s{sW}, 0
    s_cbranch_scc1 L_q_b
    v_mov_b32 v1, 1
    v_mov_b32 v2, {D_QUEUE}
    s_mov_b64 exec, 1
    buffer_atomic_add v1, v2, {DB}, 0 offen sc0
    s_waitcnt vmcnt(0)
    v_mov_b32 v2, 163836
    ds_write_b32 v2, v1
    s_waitcnt lgkmcnt(0)
    s_mov_b64 exec, -1
    L_q_b:
    s_barrier
    v_mov_b32 v2, 163836
    ds_read_b32 v1, v2
    s_waitcnt lgkmcnt(0)
    v_readfirstlane_b32 s97, v1
    s_barrier
    ''')
    for (nm,cnt,setup,lab) in jobs:
        A(f's_cmp_lt_u32 s97, {cnt}')
        A(f's_cbranch_scc1 L_set_{nm}')
        A(f's_sub_u32 s97, s97, {cnt}')
    A('s_branch L_end')
    for (nm,cnt,setup,lab) in jobs:
        A(f'L_set_{nm}:')
        setup(A)
        A(f's_branch {lab}')
    A(f'''
    L_jobdone:
    s_waitcnt vmcnt(0) lgkmcnt(0)
    s_barrier
    s_cmp_lg_u32 s{sW}, 0
    s_cbranch_scc1 L_next
    ''')
    ensure_flagrdy(A,'L_fr')
    A(f'''
    v_mov_b32 v1, 1
    v_mov_b32 v2, 0
    s_mov_b64 exec, 1
    buffer_atomic_add v1, v2, {WS}, s{sSig} offen
    s_mov_b64 exec, -1
    s_branch L_next
    ''')

def fl(k): return FLG_OFF+128*k
def dep(A, k, target, lab):
    l2=lab+'_e'
    A(f's_cmp_lg_u32 s{sW}, 0'); A(f's_cbranch_scc1 {l2}')
    ensure_flagrdy(A,lab+'_fr')
    A(f'{l2}:')
    A(f's_mov_b32 s98, {fl(k)}')
    wait_flag(A,98,target,lab)

def gen(full=True, nsmall=2, **kw):
    A=Sched()
    def s_prep(A):
        A(f's_mov_b32 s{sJ}, s97'); A(f's_mov_b32 s{sSig}, {fl(F_PREP)}')
    def s_kv(A):
        A(f'''s_lshr_b32 s24, s97, 5
        s_bfe_u32 s25, s97, 0x10004
        s_and_b32 s26, s97, 15
        s_lshl_b32 s{sJ}, s25, 8
        s_lshl_b32 s27, s24, 4
        s_add_u32 s{sJ}, s{sJ}, s27
        s_add_u32 s{sJ}, s{sJ}, s26
        s_lshl_b32 s27, s24, 7
        s_add_u32 s{sSig}, s27, {fl(F_KV)}''')
    def s_q(A):
        A(f'''s_add_u32 s{sJ}, s97, 512
        s_lshr_b32 s27, s97, 4
        s_lshl_b32 s27, s27, 7
        s_add_u32 s{sSig}, s27, {fl(F_Q)}''')
    def s_a1(A):
        dep(A,F_PREP,64,'L_da1')
        A(f's_mov_b32 s{sJ}, s97'); A(f's_mov_b32 s{sSig}, {fl(F_A1)}')
    def s_kvr(A):
        dep(A,F_A1,128,'L_dkvr')
        A(f's_mov_b32 s{sJ}, s97'); A(f's_mov_b32 s{sSig}, {fl(F_KVR)}')
    def s_a2(A):
        dep(A,F_KVR,32,'L_da2')
        A(f'''s_mov_b32 s{sJ}, s97
        s_lshr_b32 s27, s97, 3
        s_lshl_b32 s27, s27, 7
        s_add_u32 s{sSig}, s27, {fl(F_A2)}''')
    def s_c(tb):
        def f(A):
            dep(A,F_Q+tb,16,f'L_dc{tb}q'); dep(A,F_KV+tb,32,f'L_dc{tb}k')
            A(f's_add_u32 s{sJ}, s97, {32*tb}'); A(f's_mov_b32 s{sSig}, {fl(F_C+tb)}')
        return f
    def s_o(tb):
        def f(A):
            dep(A,F_C+tb,32,f'L_do{tb}c'); dep(A,F_A2+tb,8,f'L_do{tb}a')
            A(f's_add_u32 s{sJ}, s97, {10*tb}'); A(f's_mov_b32 s{sSig}, {fl(F_N)}')
        return f
    def s_os(tb):
        def f(A):
            dep(A,F_C+tb,32,f'L_ds{tb}c'); dep(A,F_A2+tb,8,f'L_ds{tb}a')
            A(f's_add_u32 s{sJ}, s97, {80*tb}'); A(f's_mov_b32 s{sSig}, {fl(F_N)}')
        return f
    jobs=[('prep',64,s_prep,'JPREP'),('kv',512,s_kv,'JP'),('a1',128,s_a1,'JA1'),('q',256,s_q,'JP'),('kvr',32,s_kvr,'JKVR'),('a2',128,s_a2,'JA2')]
    if full:
        for tb in range(16):
            jobs.append((f'c{tb}',32,s_c(tb),'JC'))
            if tb>=1:
                t=tb-1
                jobs.append((f'o{t}',80,s_os(t),'JOS') if t>=16-nsmall else (f'o{t}',10,s_o(t),'JO'))
        jobs.append(('o15',80,s_os(15),'JOS'))
        kw=dict(kw,prog=True,kvflag='sc1')
    A.raw(kernel_header('main_kernel'))
    chain7.gen_body(A, other='L_worker', merged=True, **kw)
    worker(A,jobs)
    for fn,lab in ((gemm.job_proj,'JP'),(jobs_a.job_prep,'JPREP'),(jobs_a.job_a1,'JA1'),(jobs_a.job_kvred,'JKVR'),(jobs_a.job_a2,'JA2')):
        A.lq=[]; A.vq=[]
        fn(A,name=lab,endlabel='L_jobdone')
    if full:
        A.lq=[]; A.vq=[]; jobs_c.job_c(A,name='JC',endlabel='L_jobdone',merged=True)
        A.lq=[]; A.vq=[]; jobs_c.job_o(A,name='JO',endlabel='L_jobdone')
        A.lq=[]; A.vq=[]; jobs_c.job_os(A,name='JOS',endlabel='L_jobdone')
    A.raw(kernel_desc('main_kernel'))
    main=A.text()
    if full:
        return HDR+'; @launch kernel=main_kernel grid=(256,1,1) block=(256,1,1) lds=163840\n.amdgcn_target "amdgcn-amd-amdhsa--gfx950"\n.text\n'+main
    import build_v1
    t2,n2=build_v1.simple_kernel('post_kernel',[(512,jobs_c.job_c,'JC')])
    t3,n3=build_v1.simple_kernel('out_kernel',[(160,jobs_c.job_o,'JO')])
    out=HDR
    out+='; @launch kernel=main_kernel grid=(256,1,1) block=(256,1,1) lds=163840\n'
    out+=f'; @launch kernel=post_kernel grid=({n2},1,1) block=(256,1,1) lds=0\n'
    out+=f'; @launch kernel=out_kernel grid=({n3},1,1) block=(256,1,1) lds=73728\n'
    out+='.amdgcn_target "amdgcn-amd-amdhsa--gfx950"\n.text\n'+main+t2+t3
    return out
if __name__=='__main__':
    kw=eval(sys.argv[2]) if len(sys.argv)>2 else {}
    open(sys.argv[1] if len(sys.argv)>1 else 'v2.s','w').write(gen(**kw))
```

```python
from asmlib import *
from layout import *
import layout

from gemm import *

def job_c(A, name='JC', endlabel='L_end', merged=False):
    A(f'{name}:')
    A(f'''
    s_lshl_b32 s24, s{sJ}, 2
    s_add_u32 s24, s24, s{sW}            ; task
    s_lshr_b32 s25, s24, 5               ; seg
    s_and_b32 s26, s24, 31               ; head
    s_lshl_b32 s27, s24, 13              ; task*8192
    s_lshl_b32 s28, s24, 11              ; task*2048
    s_add_u32 s29, s27, {QX_OFF}
    s_add_u32 s30, s27, {KX_OFF}
    s_add_u32 s31, s27, {VX_OFF}
    s_add_u32 s32, s28, {KM_OFF}
    s_add_u32 s33, s28, {VM_OFF}
    v_lshlrev_b32 v1, 4, v0              ; lane*16
    v_lshrrev_b32 v2, 4, v0              ; g
    v_and_b32 v3, 15, v0                 ; n / i
    ''')
    WSd=f's[{S_WS}:{S_WS+3}]'
    QF=16
    KF=48
    KM=80
    VF=96
    VM=128
    def big(off): return off
    for U in range(2):
        A(f's_add_u32 s34, s29, {U*4096}')
        for ks in range(4): A(f'buffer_load_dwordx4 v[{QF+(U*4+ks)*4}:{QF+(U*4+ks)*4+3}], v1, {WSd}, s34 offen offset:{ks*1024} sc1')
    for T in range(2):
        A(f's_add_u32 s34, s30, {T*4096}')
        for ks in range(4): A(f'buffer_load_dwordx4 v[{KF+(T*4+ks)*4}:{KF+(T*4+ks)*4+3}], v1, {WSd}, s34 offen offset:{ks*1024} sc1')
    for h in range(2):
        A(f's_add_u32 s34, s31, {h*4096}')
        for t in range(4): A(f'buffer_load_dwordx4 v[{VF+(h*4+t)*4}:{VF+(h*4+t)*4+3}], v1, {WSd}, s34 offen offset:{t*1024} sc1')
    for r in range(VM,VM+32,2): A(f'v_mov_b64 v[{r}:{r+1}], 0')
    if merged:
        A(f'''
        s_lshl_b32 s36, s26, 10
        s_lshl_b32 s37, s25, 4
        s_add_u32 s36, s36, s37
        s_add_u32 s36, s36, {PROG_OFF}
        s_add_u32 s37, s36, {32*1024}
        s_mov_b32 s38, 0
        v_mov_b32 v4, 0
        {name}_pw:
        buffer_load_dword v5, v4, {WSd}, s36 offen sc1
        buffer_load_dword v6, v4, {WSd}, s37 offen sc1
        s_waitcnt vmcnt(0)
        v_and_b32 v5, v5, v6
        s_nop 0
        v_readfirstlane_b32 s39, v5
        s_add_u32 s38, s38, 1
        s_cmp_ge_u32 s38, 4000000
        s_cbranch_scc1 {name}_pd
        s_cmp_lg_u32 s39, 0
        s_cbranch_scc1 {name}_pd
        s_sleep 2
        s_branch {name}_pw
        {name}_pd:
        ''')
    A(f'''
    buffer_load_dwordx4 v[{KM}:{KM+3}], v1, {WSd}, s32 offen sc1
    buffer_load_dwordx4 v[{KM+4}:{KM+7}], v1, {WSd}, s32 offen offset:1024 sc1
    s_lshl_b32 s38, s{sW}, 11
    v_add_u32 v4, s38, v1
    s_waitcnt vmcnt(0)
    ds_write_b128 v4, v[{KM}:{KM+3}]
    ds_write_b128 v4, v[{KM+4}:{KM+7}] offset:1024
    v_lshrrev_b32 v13, 1, v2
    v_lshlrev_b32 v13, 4, v13
    v_and_b32 v14, 1, v2
    v_lshl_add_u32 v13, v14, 2, v13
    v_bfe_u32 v14, v0, 2, 2
    v_add_u32 v13, v13, v14
    v_lshlrev_b32 v13, 4, v13
    v_and_b32 v14, 1, v0
    v_lshl_add_u32 v13, v14, 3, v13
    v_add_u32 v13, s38, v13
    s_waitcnt lgkmcnt(0)
    ''')
    for ks in range(4):
        for jh in range(2): A(f'ds_read_b64_tr_b16 v[{KM+ks*4+2*jh}:{KM+ks*4+2*jh+1}], v13 offset:{(32*ks+8*jh)*16}')
    A('s_waitcnt lgkmcnt(0)')
    A(f'''
    v_lshlrev_b32 v5, 4, v3
    v_lshl_add_u32 v5, v2, 3, v5
    s_mov_b32 exec_hi, 0
    ''')
    for t in range(8): A(f'buffer_load_dwordx2 v[{VM+t*4}:{VM+t*4+1}], v5, {WSd}, s33 offen offset:{t*256} sc1')
    A('s_mov_b64 exec, -1')
    A(f'''
    v_lshrrev_b32 v6, 1, v2
    v_lshlrev_b32 v6, 4, v6
    v_and_b32 v7, 1, v2
    v_lshl_add_u32 v6, v7, 2, v6
    v_lshrrev_b32 v7, 3, v3
    v_lshlrev_b32 v7, 4, v7
    v_bfe_u32 v8, v3, 2, 1
    v_lshl_add_u32 v7, v8, 2, v7
    v_and_b32 v8, 3, v3
    v_add_u32 v7, v7, v8
    v_sub_u32 v8, v7, v6
    s_lshl_b32 s34, s25, 5
    v_add_u32 v9, s34, v7
    v_lshlrev_b32 v10, 2, v9
    s_mov_b32 s35, {G_OFF}
    buffer_load_dword v11, v10, {WSd}, s35 offen sc1
    buffer_load_dword v12, v10, {WSd}, s35 offen offset:32 sc1
    s_mov_b32 s60, 0x3e0293ee
    s_mov_b32 s61, 0xff800000             ; -inf
    s_waitcnt vmcnt(0)
    ''')
    S=160
    for U in range(2):
        for T in range(3):
            acc=S+(U*3+T)*4
            for ks in range(4):
                a=(KF+(T*4+ks)*4) if T<2 else KM+ks*4
                c='0' if ks==0 else f'v[{acc}:{acc+3}]'
                A(f'v_mfma_f32_16x16x32_bf16 v[{acc}:{acc+3}], v[{a}:{a+3}], v[{QF+(U*4+ks)*4}:{QF+(U*4+ks)*4+3}], {c}')
    A('s_nop 7')
    A('v_cmp_gt_u32 s[62:63], 2, v2')
    P=184
    ON=200
    for r in range(4): A(f'v_mov_b32 v{ON+r}, 0x3f803f80')
    for U in range(2):
        sx=[S+(U*3+T)*4+r for T in range(2) for r in range(4)]
        sm=[S+(U*3+2)*4+r for r in range(4)]
        for T in range(2):
            for r in range(4):
                A(f'v_cmp_le_i32 vcc, {8*T+r-8*U}, v8')
                A('s_nop 1') if False else None
                A(f'v_mov_b32 v13, s61')
                A('s_nop 0')
                A(f'v_cndmask_b32 v{sx[T*4+r]}, v13, v{sx[T*4+r]}, vcc')
        for r in range(4):
            A(f'v_mov_b32 v13, s61')
            A(f'v_cndmask_b32_e64 v{sm[r]}, v13, v{sm[r]}, s[62:63]')
        al=sx+sm
        A(f'v_max3_f32 v13, v{al[0]}, v{al[1]}, v{al[2]}')
        A(f'v_max3_f32 v14, v{al[3]}, v{al[4]}, v{al[5]}')
        A(f'v_max3_f32 v13, v13, v{al[6]}, v{al[7]}')
        A(f'v_max3_f32 v14, v14, v{al[8]}, v{al[9]}')
        A(f'v_max3_f32 v13, v13, v{al[10]}, v{al[11]}')
        A('v_max_f32 v13, v13, v14')
        for sw in ('32','16'):
            A('v_mov_b32 v14, v13'); A('s_nop 1'); A(f'v_permlane{sw}_swap_b32 v13, v14'); A('v_max_f32 v13, v13, v14')
        A('v_mul_f32 v13, s60, v13')
        for r in al: A(f'v_fma_f32 v{r}, v{r}, s60, -v13')
        for r in al: A(f'v_exp_f32 v{r}, v{r}')
        A('s_nop 0')
        for i in range(4): A(f'v_cvt_pk_bf16_f32 v{P+U*8+i}, v{sx[2*i]}, v{sx[2*i+1]}')
        for i in range(2): A(f'v_cvt_pk_bf16_f32 v{P+U*8+4+i}, v{sm[2*i]}, v{sm[2*i+1]}')
        A(f'v_mov_b64 v[{P+U*8+6}:{P+U*8+7}], 0')
    O=208
    L=160
    A('s_nop 1')
    for U in range(2):
        acc=L+U*4
        A(f'v_mfma_f32_16x16x32_bf16 v[{acc}:{acc+3}], v[{ON}:{ON+3}], v[{P+U*8}:{P+U*8+3}], 0')
        A(f'v_mfma_f32_16x16x32_bf16 v[{acc}:{acc+3}], v[{ON}:{ON+3}], v[{P+U*8+4}:{P+U*8+7}], v[{acc}:{acc+3}]')
    A(f'''
    s_mov_b32 s34, {OM_PITCH}
    v_mul_lo_u32 v10, v9, s34
    v_lshl_add_u32 v10, v2, 4, v10
    s_lshl_b32 s35, s26, 8
    s_add_u32 s35, s35, {OM_OFF+1280}
    ''')
    for U in range(2):
        OA=16 if U==0 else 208
        for t in range(8):
            acc=OA+t*4
            A(f'v_mfma_f32_16x16x32_bf16 v[{acc}:{acc+3}], v[{VF+t*4}:{VF+t*4+3}], v[{P+U*8}:{P+U*8+3}], 0')
        for t in range(8):
            acc=OA+t*4
            A(f'v_mfma_f32_16x16x32_bf16 v[{acc}:{acc+3}], v[{VM+t*4}:{VM+t*4+3}], v[{P+U*8+4}:{P+U*8+7}], v[{acc}:{acc+3}]')
    A('s_nop 7')
    for U in range(2):
        OA=16 if U==0 else 208
        A(f'v_rcp_f32 v13, v{L+U*4}')
        A(f'v_sub_f32 v14, 1.0, v{11+U}')
        A(f'v_mul_f32 v13, v13, v14')
        for r in range(32): A(f'v_mul_f32 v{OA+r}, v{OA+r}, v13')
        if U==1: A(f's_add_u32 s35, s35, {8*OM_PITCH}')
        for a in range(4):
            d=48+a*4
            A(f'v_cvt_pk_bf16_f32 v{d}, v{OA+8*a}, v{OA+8*a+1}')
            A(f'v_cvt_pk_bf16_f32 v{d+1}, v{OA+8*a+2}, v{OA+8*a+3}')
            A(f'v_cvt_pk_bf16_f32 v{d+2}, v{OA+8*a+4}, v{OA+8*a+5}')
            A(f'v_cvt_pk_bf16_f32 v{d+3}, v{OA+8*a+6}, v{OA+8*a+7}')
            A(f'buffer_store_dwordx4 v[{d}:{d+3}], v10, {WSd}, s35 offen offset:{a*64} sc1')
        A('s_nop 1')
    A(f's_branch {endlabel}')

class GO:
    NSG=6
    LW=[16384*i for i in range(6)]; LA=[98304+8192*i for i in range(6)]
    vAd=2; vWd=4; vWd2=6; vAr=8; vBr=12; vBr2=14; FA=16; FB=24; ACC=64
    def __init__(s,A): s.A=A
    def setup(s):
        A=s.A
        A(f'''
        v_lshrrev_b32 v40, 3, v0
        s_mov_b32 s40, {OM_PITCH}
        v_mul_lo_u32 v40, v40, s40
        v_and_b32 v41, 7, v0
        v_lshrrev_b32 v42, 4, v0
        v_xor_b32 v43, v41, v42
        v_lshl_add_u32 v{s.vAd}, v43, 4, v40
        v_xor_b32 v43, 4, v43
        v_lshl_add_u32 v{s.vAd+1}, v43, 4, v40
        v_lshrrev_b32 v40, 4, v0             ; row&3
        v_and_b32 v41, 15, v0
        v_lshlrev_b32 v42, 2, v40
        v_xor_b32 v43, v41, v42
        v_mul_u32_u24 v44, 1280, v40
        v_lshl_add_u32 v{s.vWd}, v43, 4, v44
        s_and_b32 s41, s{sW}, 1
        s_lshl_b32 s41, s41, 12              ; 32 rows*128
        s_add_u32 s41, s41, {s.LA[0]}
        v_and_b32 v40, 31, v0
        v_lshlrev_b32 v41, 7, v40
        v_add_u32 v41, s41, v41
        v_lshrrev_b32 v42, 1, v40
        v_and_b32 v42, 7, v42
        v_lshrrev_b32 v43, 5, v0
        v_xor_b32 v42, v42, v43
        ''')
        for ks in range(4):
            A(f'v_xor_b32 v43, {2*ks}, v42'); A(f'v_lshl_add_u32 v{s.vAr+ks}, v43, 4, v41')
        A(f'''
        v_bfe_u32 v40, v0, 2, 2              ; r
        v_lshrrev_b32 v41, 5, v0
        v_lshlrev_b32 v41, 3, v41
        v_add_u32 v41, v41, v40
        v_lshlrev_b32 v41, 8, v41            ; *256
        v_bfe_u32 v42, v0, 4, 1
        v_lshl_add_u32 v41, v42, 5, v41
        v_and_b32 v42, 3, v0
        v_lshl_add_u32 v41, v42, 3, v41
        s_lshr_b32 s41, s{sW}, 1
        s_lshl_b32 s41, s41, 1               ; 2wn
        ''')
        for nt in range(2):
            A(f's_add_u32 s42, s41, {nt}'); A(f'v_xor_b32 v42, s42, v40'); A(f'v_lshl_add_u32 v{s.vBr+nt}, v42, 6, v41')
            A(f'v_add_u32 v{s.vBr2+nt}, 0x10000, v{s.vBr+nt}')
        A(f's_mul_i32 s45, s{sW}, {16*OM_PITCH}')
        A(f's_mov_b32 s46, s45'); A(f's_add_u32 s47, s45, {8*OM_PITCH}')
        A(f's_lshl_b32 s50, s{sW}, 11'); A(f's_lshl_b32 s51, s{sW}, 12')
        for j in range(4):
            A(f's_mul_i32 s{52+j}, s{sW}, {16*1280}'); A(f's_add_u32 s{52+j}, s{52+j}, {4*j*1280}')
            A(f's_lshr_b32 s44, s{sW}, 1'); A('s_lshl_b32 s44, s44, 5')
            A(f's_and_b32 s43, s{sW}, 1'); A('s_lshl_b32 s43, s43, 3')
            A('s_add_u32 s44, s44, s43'); A(f's_add_u32 s44, s44, {16*(j&1)+4*(j>>1)}')
            A(f's_mul_i32 s{56+j}, s44, 1280')
    def dma(s,buf,partB):
        out=[]
        for j in range(2):
            out.append([f's_add_u32 s44, s30, s{46+j}', f's_add_u32 m0, s50, {s.LA[buf]+j*1024}', f'buffer_load_dwordx4 v{s.vAd+j}, s[{S_WS}:{S_WS+3}], s44 offen sc1 lds'])
        for j in range(4):
            out.append([f's_add_u32 s44, s31, s{(56 if partB else 52)+j}', f's_add_u32 m0, s51, {s.LW[buf]+j*1024}', f'buffer_load_dwordx4 v{s.vWd}, s[{S_W}:{S_W+3}], s44 offen lds'])
        return out
    def compute(s,buf,fill,first):
        A=s.A
        def rd(ks,st):
            d=s.FA+st*4
            A.lds(f'ds_read_b128 v[{d}:{d+3}], v{s.vAr+ks} offset:{s.LA[buf]-s.LA[0]}',('A',ks))
            for nt in range(2):
                d=s.FB+st*8+nt*4
                for jh in range(2):
                    br=(s.vBr if buf<4 else s.vBr2)+nt; off=(s.LW[buf] if buf<4 else s.LW[buf]-65536)+(16*ks+4*jh)*256
                    A.lds(f'ds_read_b64_tr_b16 v[{d+2*jh}:{d+2*jh+1}], v{br} offset:{off}',('A',ks))
        rd(0,0)
        for ks in range(4):
            st=ks&1
            if ks<3: rd(ks+1,st^1)
            A.wl(('A',ks))
            for nt in range(2):
                acc=s.ACC+nt*16
                c='0' if (first and ks==0) else f'v[{acc}:{acc+15}]'
                A(f'v_mfma_f32_32x32x16_bf16 v[{acc}:{acc+15}], v[{s.FA+st*4}:{s.FA+st*4+3}], v[{s.FB+st*8+nt*4}:{s.FB+st*8+nt*4+3}], {c}')
                if fill:
                    for x in fill.pop(0): A(x)
        while fill:
            for x in fill.pop(0): A(x)

def job_o(A, name='JO', endlabel='L_end'):
    g=GO(A)
    A(f'{name}:')
    A(f'''
    s_mul_i32 s24, s{sJ}, 13108
    s_lshr_b32 s24, s24, 16              ; mb
    s_mul_i32 s25, s24, 5
    s_sub_u32 s25, s{sJ}, s25            ; nb
    ''')
    g.setup()
    A(f'''
    s_mul_i32 s30, s24, {64*OM_PITCH}
    s_add_u32 s30, s30, {OM_OFF}
    s_lshl_b32 s31, s25, 8
    s_mov_b32 s62, s31
    ''')
    srd(A,S_W,P_WO_A,P_WO_A+1,640*640*2)
    NI=74
    def adv(k):
        if k==9:
            return [[f's_add_u32 s30, s30, 128', f's_mov_b32 s31, s62', f's_mov_b32 s{S_W}, s{P_WO}', f's_and_b32 s{S_W+1}, s{P_WO+1}, 0xffff', f's_mov_b32 s{S_W+2}, {4096*640*2}']]
        return [[f's_add_u32 s30, s30, 128', f's_add_u32 s31, s31, {64*1280}']]
    NS=6; D=NS-1
    for k in range(D):
        for grp in g.dma(k,False):
            for x in grp: A(x)
        for x in adv(k)[0]: A(x)
    def it(k,dma_k,first=False):
        rem=min(D-1, NI-1-k)
        A(f's_waitcnt vmcnt({6*rem})')
        A('s_barrier')
        fill=[]
        if dma_k is not None: fill=g.dma(dma_k%NS,dma_k>=10)+adv(dma_k)
        A.lq=[]
        g.compute(k%NS,fill,first)
    for k in range(8): it(k,k+D,first=(k==0))
    A('s_mov_b32 s63, 10')
    A(f'{name}_loop:')
    for k in range(8,14): it(k,k+D)
    A('s_sub_u32 s63, s63, 1'); A('s_cmp_lg_u32 s63, 0'); A(f's_cbranch_scc1 {name}_loop')
    for k in range(68,74): it(k, k+D if k+D<NI else None)
    A('s_nop 15'); A('s_nop 3')
    srd(A,S_A,P_OUT,P_OUT+1,2048*640*2)
    A(f'''
    v_lshrrev_b32 v40, 5, v0
    v_and_b32 v41, 31, v0
    v_mul_u32_u24 v40, {4*1280}, v40
    v_lshl_add_u32 v40, v41, 1, v40
    s_lshl_b32 s26, s24, 6
    s_and_b32 s27, s{sW}, 1
    s_lshl_b32 s27, s27, 5
    s_add_u32 s26, s26, s27              ; token0
    s_mul_i32 s26, s26, 1280
    s_lshl_b32 s27, s25, 8
    s_add_u32 s26, s26, s27
    s_lshr_b32 s27, s{sW}, 1
    s_lshl_b32 s27, s27, 7
    s_add_u32 s26, s26, s27
    ''')
    for nt in range(2):
        for r in range(0,16,2):
            acc=g.ACC+nt*16+r
            A(f'v_cvt_pk_bf16_f32 v44, v{acc}, v{acc+1}')
            row0=8*(r>>2)+(r&3)
            A(f's_add_u32 s27, s26, {row0*1280+nt*64}')
            A(f'buffer_store_short v44, v40, s[{S_A}:{S_A+3}], s27 offen')
            A(f'buffer_store_short_d16_hi v44, v40, s[{S_A}:{S_A+3}], s27 offen offset:1280')
            A('s_nop 0')
    A(f's_branch {endlabel}')


def job_os(A, name='JOS', endlabel='L_end'):
    NS=4
    WB=NS*8192
    vAd=2; vWd=4; vWdP=5; vAr=8; vBr=12; FA=16; FB=24; ACC=32
    A(f'{name}:')
    A(f'''
    s_mul_i32 s24, s{sJ}, 3277
    s_lshr_b32 s24, s24, 16
    s_mul_i32 s25, s24, 20
    s_sub_u32 s25, s{sJ}, s25            ; ct
    s_mul_i32 s26, s{sW}, {WB}
    v_lshrrev_b32 v40, 3, v0
    s_mov_b32 s40, {OM_PITCH}
    v_mul_lo_u32 v40, v40, s40
    v_and_b32 v41, 7, v0
    v_lshrrev_b32 v42, 4, v0
    v_xor_b32 v43, v41, v42
    v_lshl_add_u32 v{vAd}, v43, 4, v40
    v_xor_b32 v43, 4, v43
    v_lshl_add_u32 v{vAd+1}, v43, 4, v40
    v_lshrrev_b32 v40, 2, v0             ; rr = 0..15
    v_and_b32 v41, 3, v0
    v_mul_u32_u24 v42, 1280, v40
    v_lshl_add_u32 v{vWd}, v41, 4, v42   ; natural
    v_bfe_u32 v42, v40, 2, 1
    v_lshlrev_b32 v42, 4, v42
    v_lshrrev_b32 v43, 3, v40
    v_lshl_add_u32 v42, v43, 2, v42
    v_and_b32 v43, 3, v40
    v_add_u32 v42, v42, v43
    v_mul_u32_u24 v42, 1280, v42
    v_lshl_add_u32 v{vWdP}, v41, 4, v42
    v_and_b32 v40, 31, v0
    v_lshlrev_b32 v41, 7, v40
    v_add_u32 v41, s26, v41
    v_lshrrev_b32 v42, 1, v40
    v_and_b32 v42, 7, v42
    v_lshrrev_b32 v43, 5, v0
    v_xor_b32 v42, v42, v43
    ''')
    for ks in range(4):
        A(f'v_xor_b32 v43, {2*ks}, v42'); A(f'v_lshl_add_u32 v{vAr+ks}, v43, 4, v41')
    A(f'''
    v_bfe_u32 v40, v0, 2, 2
    v_lshrrev_b32 v41, 5, v0
    v_lshlrev_b32 v41, 3, v41
    v_add_u32 v41, v41, v40
    v_lshlrev_b32 v41, 6, v41
    v_bfe_u32 v42, v0, 4, 1
    v_lshl_add_u32 v41, v42, 5, v41
    v_and_b32 v42, 3, v0
    v_lshl_add_u32 v41, v42, 3, v41
    v_add_u32 v{vBr}, s26, v41
    s_mul_i32 s30, s24, {32*OM_PITCH}
    s_add_u32 s30, s30, {OM_OFF}         ; A base (k=0)
    s_lshl_b32 s62, s25, 6
    ''')
    for r in range(16): A(f'v_mov_b32 v{ACC+r}, 0')
    def issue(stage, part):
        for j in range(4):
            A(f's_add_u32 s44, s31, {j*8*OM_PITCH}'); A(f's_add_u32 m0, s26, {stage*8192+j*1024}')
            A(f'buffer_load_dwordx4 v{vAd+(j&1)}, s[{S_WS}:{S_WS+3}], s44 offen sc1 lds')
        for j in range(4):
            off=(16*j*1280) if part==0 else (32*(j>>1)+8*(j&1))*1280
            A(f's_add_u32 s44, s33, {off}'); A(f's_add_u32 m0, s26, {stage*8192+4096+j*1024}')
            A(f'buffer_load_dwordx4 v{vWd if part==0 else vWdP}, s[{S_W}:{S_W+3}], s44 offen lds')
    def comp(stage):
        for ks in range(4):
            st=ks&1
            A(f'ds_read_b128 v[{FA+st*4}:{FA+st*4+3}], v{vAr+ks} offset:{stage*8192}')
            for jh in range(2): A(f'ds_read_b64_tr_b16 v[{FB+st*4+2*jh}:{FB+st*4+2*jh+1}], v{vBr} offset:{stage*8192+4096+(16*ks+4*jh)*64}')
            A('s_waitcnt lgkmcnt(0)')
            A(f'v_mfma_f32_32x32x16_bf16 v[{ACC}:{ACC+15}], v[{FA+st*4}:{FA+st*4+3}], v[{FB+st*4}:{FB+st*4+3}], v[{ACC}:{ACC+15}]')
    srd(A,S_W,P_WO_A,P_WO_A+1,640*640*2)
    for k in range(3):
        l=f'{name}_a{k}'
        A(f's_add_u32 s34, s{sW}, {4*k}')
        if k==2: A('s_cmp_ge_u32 s34, 10'); A(f's_cbranch_scc1 {l}')
        A('s_lshl_b32 s35, s34, 7'); A('s_add_u32 s31, s30, s35')
        A(f's_mul_i32 s35, s34, {64*1280}'); A('s_add_u32 s33, s62, s35')
        issue(k,0)
        if k==2: A(f'{l}:')
    A('s_waitcnt vmcnt(0)')
    comp(0); comp(1)
    A(f's_cmp_ge_u32 s{sW}, 2'); A(f's_cbranch_scc1 {name}_a3')
    comp(2)
    A(f'{name}_a3:')
    srd(A,S_W,P_WO,P_WO+1,4096*640*2)
    A(f'''
    s_lshl_b32 s35, s{sW}, 7
    s_add_u32 s31, s30, s35
    s_add_u32 s31, s31, 1280
    s_mul_i32 s35, s{sW}, {64*1280}
    s_add_u32 s33, s62, s35
    ''')
    def adv(): A('s_add_u32 s31, s31, 512'); A(f's_add_u32 s33, s33, {4*64*1280}')
    for m in range(NS-1): issue(m,1); adv()
    nfl=8*(NS-1)
    A('s_mov_b32 s63, 3')
    A(f'{name}_loop:')
    for st in range(NS):
        issue((st+NS-1)%NS,1); adv()
        A(f's_waitcnt vmcnt({nfl})')
        comp(st)
    A('s_sub_u32 s63, s63, 1'); A('s_cmp_lg_u32 s63, 0'); A(f's_cbranch_scc1 {name}_loop')
    issue(3,1); A(f's_waitcnt vmcnt({nfl})'); comp(0)
    A('s_waitcnt vmcnt(16)'); comp(1)
    A('s_waitcnt vmcnt(8)'); comp(2)
    A('s_waitcnt vmcnt(0)'); comp(3)
    A('s_nop 15'); A('s_nop 3')
    A(f'''
    s_barrier
    s_lshl_b32 s34, s{sW}, 12
    v_lshlrev_b32 v70, 2, v0
    v_add_u32 v71, s34, v70
    v_add_u32 v71, 131072, v71
    ''')
    for r in range(16): A(f'ds_write_b32 v71, v{ACC+r} offset:{r*256}')
    A(f'''
    s_waitcnt lgkmcnt(0)
    s_barrier
    s_lshl_b32 s34, s{sW}, 10
    v_add_u32 v71, s34, v70
    v_add_u32 v71, 131072, v71
    ''')
    for ww in range(4):
        for r in range(4): A(f'ds_read_b32 v{48+ww*4+r}, v71 offset:{ww*4096+r*256}')
    A('s_waitcnt lgkmcnt(0)')
    for r in range(4):
        A(f'v_add_f32 v{48+r}, v{48+r}, v{52+r}'); A(f'v_add_f32 v{56+r}, v{56+r}, v{60+r}'); A(f'v_add_f32 v{48+r}, v{48+r}, v{56+r}')
    srd(A,S_A,P_OUT,P_OUT+1,2048*640*2)
    A(f'''
    v_cvt_pk_bf16_f32 v74, v48, v49
    v_cvt_pk_bf16_f32 v75, v50, v51
    v_lshrrev_b32 v70, 5, v0
    v_and_b32 v71, 31, v0
    v_mul_u32_u24 v70, {4*1280}, v70
    v_lshl_add_u32 v70, v71, 1, v70
    s_lshl_b32 s26, s24, 5
    s_lshl_b32 s27, s{sW}, 3
    s_add_u32 s26, s26, s27
    s_mul_i32 s26, s26, 1280
    s_add_u32 s26, s26, s62
    buffer_store_short v74, v70, s[{S_A}:{S_A+3}], s26 offen
    buffer_store_short_d16_hi v74, v70, s[{S_A}:{S_A+3}], s26 offen offset:1280
    buffer_store_short v75, v70, s[{S_A}:{S_A+3}], s26 offen offset:2560
    buffer_store_short_d16_hi v75, v70, s[{S_A}:{S_A+3}], s26 offen offset:3840
    s_branch {endlabel}
    ''')
```

```python
import sys,os; sys.path.insert(0,'gen')
from asmlib import *
from layout import *
import gemm, jobs_a, jobs_c
import importlib
chain7=importlib.import_module(os.environ.get("CHAIN","chain9"))
from gemm import S_WS, sW, sJ
REF='gated_mix__linear_kernel_hedgehog__memory_aug_recurrent_mem_tr__prompt.s.ref'
HDR=open(REF).read().split('; Override launch geometry')[0] if os.path.exists(REF) else ''
S_D=64
sSig=68
sSeen=69
sFail=70
WS=f's[{S_WS}:{S_WS+3}]'; DB=f's[{S_D}:{S_D+3}]'

def wait_flag(A, off_reg, target, lab):
    A(f'''
    s_cmp_lg_u32 s{sW}, 0
    s_cbranch_scc1 {lab}_b
    s_mov_b32 s71, 0
    v_mov_b32 v2, 0
    {lab}_p:
    buffer_load_dword v1, v2, {WS}, s{off_reg} offen sc1
    s_waitcnt vmcnt(0)
    v_readfirstlane_b32 s96, v1
    s_add_u32 s71, s71, 1
    s_cmp_ge_u32 s71, 2000000
    s_cbranch_scc1 {lab}_b
    s_cmp_ge_u32 s96, {target}
    s_cbranch_scc1 {lab}_b
    s_sleep 4
    s_branch {lab}_p
    {lab}_b:
    s_barrier
    ''')
def ensure_flagrdy(A, lab):
    A(f'''
    s_cmp_lg_u32 s{sSeen}, 0
    s_cbranch_scc1 {lab}_d
    s_mov_b32 s71, 0
    v_mov_b32 v2, {D_FLAGRDY}
    {lab}_p:
    buffer_load_dword v1, v2, {DB}, 0 offen sc1
    s_waitcnt vmcnt(0)
    v_readfirstlane_b32 s96, v1
    s_add_u32 s71, s71, 1
    s_cmp_ge_u32 s71, 2000000
    s_cbranch_scc1 {lab}_s
    s_cmp_eq_u32 s96, 0
    s_cbranch_scc1 {lab}_p
    {lab}_s:
    s_mov_b32 s{sSeen}, 1
    {lab}_d:
    ''')

PROF_OFF=0x6900000
PROF=[False]
def worker(A, jobs):
    A('L_worker:')
    gemm.common_prologue(A, lane_done=True)
    A(f'''
    s_mov_b32 s{S_D}, s6
    s_and_b32 s{S_D+1}, s7, 0xffff
    s_mov_b32 s{S_D+2}, 256
    s_mov_b32 s{S_D+3}, 0x20000
    s_mov_b32 s{sSeen}, 0
    L_next:
    s_cmp_lg_u32 s{sW}, 0
    s_cbranch_scc1 L_q_b
    v_mov_b32 v1, 1
    v_mov_b32 v2, {D_QUEUE}
    s_mov_b64 exec, 1
    buffer_atomic_add v1, v2, {DB}, 0 offen sc0
    s_waitcnt vmcnt(0)
    v_mov_b32 v2, 163836
    ds_write_b32 v2, v1
    s_waitcnt lgkmcnt(0)
    s_mov_b64 exec, -1
    L_q_b:
    s_barrier
    v_mov_b32 v2, 163836
    ds_read_b32 v1, v2
    s_waitcnt lgkmcnt(0)
    v_readfirstlane_b32 s97, v1
    s_barrier
    ''')
    if PROF[0]:
        A('s_mov_b32 s99, s97'); A('s_memrealtime s[100:101]'); A('s_waitcnt lgkmcnt(0)'); A('s_mov_b32 s3, s100')
    for (nm,cnt,setup,lab) in jobs:
        A(f's_cmp_lt_u32 s97, {cnt}')
        A(f's_cbranch_scc1 L_set_{nm}')
        A(f's_sub_u32 s97, s97, {cnt}')
    A('s_branch L_end')
    for (nm,cnt,setup,lab) in jobs:
        A(f'L_set_{nm}:')
        setup(A)
        A(f's_branch {lab}')
    A(f'''
    L_jobdone:
    s_waitcnt vmcnt(0) lgkmcnt(0)
    s_barrier
    s_cmp_lg_u32 s{sW}, 0
    s_cbranch_scc1 L_next
    ''')
    if PROF[0]:
        A(f'''s_memrealtime s[100:101]
        s_waitcnt lgkmcnt(0)
        v_mov_b32 v4, s3
        v_mov_b32 v5, s100
        s_lshl_b32 s96, s99, 3
        s_add_u32 s96, s96, {PROF_OFF}
        v_mov_b32 v2, 0
        s_mov_b64 exec, 1
        buffer_store_dwordx2 v[4:5], v2, {WS}, s96 offen
        s_mov_b64 exec, -1''')
    ensure_flagrdy(A,'L_fr')
    A(f'''
    v_mov_b32 v1, 1
    v_mov_b32 v2, 0
    s_mov_b64 exec, 1
    buffer_atomic_add v1, v2, {WS}, s{sSig} offen
    s_mov_b64 exec, -1
    s_branch L_next
    ''')

def fl(k): return FLG_OFF+128*k
def dep(A, k, target, lab):
    l2=lab+'_e'
    A(f's_cmp_lg_u32 s{sW}, 0'); A(f's_cbranch_scc1 {l2}')
    ensure_flagrdy(A,lab+'_fr')
    A(f'{l2}:')
    A(f's_mov_b32 s98, {fl(k)}')
    wait_flag(A,98,target,lab)

def gen(full=True, nsmall=2, prof=False, **kw):
    PROF[0]=prof
    A=Sched()
    def s_prep(A):
        A(f's_mov_b32 s{sJ}, s97'); A(f's_mov_b32 s{sSig}, {fl(F_PREP)}')
    def s_kv(A):
        A(f'''s_lshr_b32 s24, s97, 5
        s_bfe_u32 s25, s97, 0x10004
        s_and_b32 s26, s97, 15
        s_lshl_b32 s{sJ}, s25, 8
        s_lshl_b32 s27, s24, 4
        s_add_u32 s{sJ}, s{sJ}, s27
        s_add_u32 s{sJ}, s{sJ}, s26
        s_lshl_b32 s27, s24, 7
        s_add_u32 s{sSig}, s27, {fl(F_KV)}''')
    def s_q(A):
        A(f'''s_add_u32 s{sJ}, s97, 512
        s_lshr_b32 s27, s97, 4
        s_lshl_b32 s27, s27, 7
        s_add_u32 s{sSig}, s27, {fl(F_Q)}''')
    def s_a1(A):
        dep(A,F_PREP,64,'L_da1')
        A(f's_mov_b32 s{sJ}, s97'); A(f's_mov_b32 s{sSig}, {fl(F_A1)}')
    def s_kvr(A):
        dep(A,F_A1,128,'L_dkvr')
        A(f's_mov_b32 s{sJ}, s97'); A(f's_mov_b32 s{sSig}, {fl(F_KVR)}')
    def s_a2(A):
        dep(A,F_KVR,32,'L_da2')
        A(f'''s_mov_b32 s{sJ}, s97
        s_lshr_b32 s27, s97, 3
        s_lshl_b32 s27, s27, 7
        s_add_u32 s{sSig}, s27, {fl(F_A2)}''')
    def s_c(tb):
        def f(A):
            dep(A,F_Q+tb,16,f'L_dc{tb}q'); dep(A,F_KV+tb,32,f'L_dc{tb}k')
            A(f's_add_u32 s{sJ}, s97, {32*tb}'); A(f's_mov_b32 s{sSig}, {fl(F_C+tb)}')
        return f
    def s_o(tb):
        def f(A):
            dep(A,F_C+tb,32,f'L_do{tb}c'); dep(A,F_A2+tb,8,f'L_do{tb}a')
            A(f's_add_u32 s{sJ}, s97, {10*tb}'); A(f's_mov_b32 s{sSig}, {fl(F_N)}')
        return f
    def s_os(tb):
        def f(A):
            dep(A,F_C+tb,32,f'L_ds{tb}c'); dep(A,F_A2+tb,8,f'L_ds{tb}a')
            A(f's_add_u32 s{sJ}, s97, {80*tb}'); A(f's_mov_b32 s{sSig}, {fl(F_N)}')
        return f
    jobs=[('prep',64,s_prep,'JPREP'),('kv',512,s_kv,'JP'),('a1',128,s_a1,'JA1'),('q',256,s_q,'JP'),('kvr',32,s_kvr,'JKVR'),('a2',128,s_a2,'JA2')]
    if full:
        for tb in range(16):
            jobs.append((f'c{tb}',32,s_c(tb),'JC'))
            if tb>=1:
                t=tb-1
                jobs.append((f'o{t}',80,s_os(t),'JOS') if t>=16-nsmall else (f'o{t}',10,s_o(t),'JO'))
        jobs.append(('o15',80,s_os(15),'JOS'))
        kw=dict(kw,prog=True,kvflag='sc1')
    A.raw(kernel_header('main_kernel'))
    chain7.gen_body(A, other='L_worker', merged=True, **kw)
    worker(A,jobs)
    for fn,lab in ((gemm.job_proj,'JP'),(jobs_a.job_prep,'JPREP'),(jobs_a.job_a1,'JA1'),(jobs_a.job_kvred,'JKVR'),(jobs_a.job_a2,'JA2')):
        A.lq=[]; A.vq=[]
        fn(A,name=lab,endlabel='L_jobdone')
    if full:
        A.lq=[]; A.vq=[]; jobs_c.job_c(A,name='JC',endlabel='L_jobdone',merged=True)
        A.lq=[]; A.vq=[]; jobs_c.job_o(A,name='JO',endlabel='L_jobdone')
        A.lq=[]; A.vq=[]; jobs_c.job_os(A,name='JOS',endlabel='L_jobdone')
    A.raw(kernel_desc('main_kernel'))
    main=A.text()
    if full:
        return HDR+'; @launch kernel=main_kernel grid=(256,1,1) block=(256,1,1) lds=163840\n.amdgcn_target "amdgcn-amd-amdhsa--gfx950"\n.text\n'+main
    import build_v1
    t2,n2=build_v1.simple_kernel('post_kernel',[(512,jobs_c.job_c,'JC')])
    t3,n3=build_v1.simple_kernel('out_kernel',[(160,jobs_c.job_o,'JO')])
    out=HDR
    out+='; @launch kernel=main_kernel grid=(256,1,1) block=(256,1,1) lds=163840\n'
    out+=f'; @launch kernel=post_kernel grid=({n2},1,1) block=(256,1,1) lds=0\n'
    out+=f'; @launch kernel=out_kernel grid=({n3},1,1) block=(256,1,1) lds=73728\n'
    out+='.amdgcn_target "amdgcn-amd-amdhsa--gfx950"\n.text\n'+main+t2+t3
    return out
if __name__=='__main__':
    kw=eval(sys.argv[2]) if len(sys.argv)>2 else {}
    open(sys.argv[1] if len(sys.argv)>1 else 'v2.s','w').write(gen(**kw))
```

```python
from asmlib import *
from layout import *
import layout

from gemm import *

def job_c(A, name='JC', endlabel='L_end', merged=False):
    A(f'{name}:')
    A(f'''
    s_lshl_b32 s24, s{sJ}, 2
    s_add_u32 s24, s24, s{sW}            ; task
    s_lshr_b32 s25, s24, 5               ; seg
    s_and_b32 s26, s24, 31               ; head
    s_lshl_b32 s27, s24, 13              ; task*8192
    s_lshl_b32 s28, s24, 11              ; task*2048
    s_add_u32 s29, s27, {QX_OFF}
    s_add_u32 s30, s27, {KX_OFF}
    s_add_u32 s31, s27, {VX_OFF}
    s_add_u32 s32, s28, {KM_OFF}
    s_add_u32 s33, s28, {VM_OFF}
    v_lshlrev_b32 v1, 4, v0              ; lane*16
    v_lshrrev_b32 v2, 4, v0              ; g
    v_and_b32 v3, 15, v0                 ; n / i
    ''')
    WSd=f's[{S_WS}:{S_WS+3}]'
    QF=16
    KF=48
    KM=80
    VF=96
    VM=128
    def big(off): return off
    for U in range(2):
        A(f's_add_u32 s34, s29, {U*4096}')
        for ks in range(4): A(f'buffer_load_dwordx4 v[{QF+(U*4+ks)*4}:{QF+(U*4+ks)*4+3}], v1, {WSd}, s34 offen offset:{ks*1024} sc1')
    for T in range(2):
        A(f's_add_u32 s34, s30, {T*4096}')
        for ks in range(4): A(f'buffer_load_dwordx4 v[{KF+(T*4+ks)*4}:{KF+(T*4+ks)*4+3}], v1, {WSd}, s34 offen offset:{ks*1024} sc1')
    for h in range(2):
        A(f's_add_u32 s34, s31, {h*4096}')
        for t in range(4): A(f'buffer_load_dwordx4 v[{VF+(h*4+t)*4}:{VF+(h*4+t)*4+3}], v1, {WSd}, s34 offen offset:{t*1024} sc1')
    for r in range(VM,VM+32,2): A(f'v_mov_b64 v[{r}:{r+1}], 0')
    if merged:
        A(f'''
        s_lshl_b32 s36, s26, 10
        s_lshl_b32 s37, s25, 4
        s_add_u32 s36, s36, s37
        s_add_u32 s36, s36, {PROG_OFF}
        s_add_u32 s37, s36, {32*1024}
        s_mov_b32 s38, 0
        v_mov_b32 v4, 0
        {name}_pw:
        buffer_load_dword v5, v4, {WSd}, s36 offen sc1
        buffer_load_dword v6, v4, {WSd}, s37 offen sc1
        s_waitcnt vmcnt(0)
        v_and_b32 v5, v5, v6
        s_nop 0
        v_readfirstlane_b32 s39, v5
        s_add_u32 s38, s38, 1
        s_cmp_ge_u32 s38, 4000000
        s_cbranch_scc1 {name}_pd
        s_cmp_lg_u32 s39, 0
        s_cbranch_scc1 {name}_pd
        s_sleep 2
        s_branch {name}_pw
        {name}_pd:
        ''')
    A(f'''
    buffer_load_dwordx4 v[{KM}:{KM+3}], v1, {WSd}, s32 offen sc1
    buffer_load_dwordx4 v[{KM+4}:{KM+7}], v1, {WSd}, s32 offen offset:1024 sc1
    s_lshl_b32 s38, s{sW}, 11
    v_add_u32 v4, s38, v1
    s_waitcnt vmcnt(0)
    ds_write_b128 v4, v[{KM}:{KM+3}]
    ds_write_b128 v4, v[{KM+4}:{KM+7}] offset:1024
    v_lshrrev_b32 v13, 1, v2
    v_lshlrev_b32 v13, 4, v13
    v_and_b32 v14, 1, v2
    v_lshl_add_u32 v13, v14, 2, v13
    v_bfe_u32 v14, v0, 2, 2
    v_add_u32 v13, v13, v14
    v_lshlrev_b32 v13, 4, v13
    v_and_b32 v14, 1, v0
    v_lshl_add_u32 v13, v14, 3, v13
    v_add_u32 v13, s38, v13
    s_waitcnt lgkmcnt(0)
    ''')
    for ks in range(4):
        for jh in range(2): A(f'ds_read_b64_tr_b16 v[{KM+ks*4+2*jh}:{KM+ks*4+2*jh+1}], v13 offset:{(32*ks+8*jh)*16}')
    A('s_waitcnt lgkmcnt(0)')
    A(f'''
    v_lshlrev_b32 v5, 4, v3
    v_lshl_add_u32 v5, v2, 3, v5
    s_mov_b32 exec_hi, 0
    ''')
    for t in range(8): A(f'buffer_load_dwordx2 v[{VM+t*4}:{VM+t*4+1}], v5, {WSd}, s33 offen offset:{t*256} sc1')
    A('s_mov_b64 exec, -1')
    A(f'''
    v_lshrrev_b32 v6, 1, v2
    v_lshlrev_b32 v6, 4, v6
    v_and_b32 v7, 1, v2
    v_lshl_add_u32 v6, v7, 2, v6
    v_lshrrev_b32 v7, 3, v3
    v_lshlrev_b32 v7, 4, v7
    v_bfe_u32 v8, v3, 2, 1
    v_lshl_add_u32 v7, v8, 2, v7
    v_and_b32 v8, 3, v3
    v_add_u32 v7, v7, v8
    v_sub_u32 v8, v7, v6
    s_lshl_b32 s34, s25, 5
    v_add_u32 v9, s34, v7
    v_lshlrev_b32 v10, 2, v9
    s_mov_b32 s35, {G_OFF}
    buffer_load_dword v11, v10, {WSd}, s35 offen sc1
    buffer_load_dword v12, v10, {WSd}, s35 offen offset:32 sc1
    s_mov_b32 s60, 0x3e0293ee
    s_mov_b32 s61, 0xff800000             ; -inf
    s_waitcnt vmcnt(0)
    ''')
    S=160
    for U in range(2):
        for T in range(3):
            acc=S+(U*3+T)*4
            for ks in range(4):
                a=(KF+(T*4+ks)*4) if T<2 else KM+ks*4
                c='0' if ks==0 else f'v[{acc}:{acc+3}]'
                A(f'v_mfma_f32_16x16x32_bf16 v[{acc}:{acc+3}], v[{a}:{a+3}], v[{QF+(U*4+ks)*4}:{QF+(U*4+ks)*4+3}], {c}')
    A('s_nop 7')
    A('v_cmp_gt_u32 s[62:63], 2, v2')
    P=184
    ON=200
    for r in range(4): A(f'v_mov_b32 v{ON+r}, 0x3f803f80')
    for U in range(2):
        sx=[S+(U*3+T)*4+r for T in range(2) for r in range(4)]
        sm=[S+(U*3+2)*4+r for r in range(4)]
        for T in range(2):
            for r in range(4):
                A(f'v_cmp_le_i32 vcc, {8*T+r-8*U}, v8')
                A('s_nop 1') if False else None
                A(f'v_mov_b32 v13, s61')
                A('s_nop 0')
                A(f'v_cndmask_b32 v{sx[T*4+r]}, v13, v{sx[T*4+r]}, vcc')
        for r in range(4):
            A(f'v_mov_b32 v13, s61')
            A(f'v_cndmask_b32_e64 v{sm[r]}, v13, v{sm[r]}, s[62:63]')
        al=sx+sm
        A(f'v_max3_f32 v13, v{al[0]}, v{al[1]}, v{al[2]}')
        A(f'v_max3_f32 v14, v{al[3]}, v{al[4]}, v{al[5]}')
        A(f'v_max3_f32 v13, v13, v{al[6]}, v{al[7]}')
        A(f'v_max3_f32 v14, v14, v{al[8]}, v{al[9]}')
        A(f'v_max3_f32 v13, v13, v{al[10]}, v{al[11]}')
        A('v_max_f32 v13, v13, v14')
        for sw in ('32','16'):
            A('v_mov_b32 v14, v13'); A('s_nop 1'); A(f'v_permlane{sw}_swap_b32 v13, v14'); A('v_max_f32 v13, v13, v14')
        A('v_mul_f32 v13, s60, v13')
        for r in al: A(f'v_fma_f32 v{r}, v{r}, s60, -v13')
        for r in al: A(f'v_exp_f32 v{r}, v{r}')
        A('s_nop 0')
        for i in range(4): A(f'v_cvt_pk_bf16_f32 v{P+U*8+i}, v{sx[2*i]}, v{sx[2*i+1]}')
        for i in range(2): A(f'v_cvt_pk_bf16_f32 v{P+U*8+4+i}, v{sm[2*i]}, v{sm[2*i+1]}')
        A(f'v_mov_b64 v[{P+U*8+6}:{P+U*8+7}], 0')
    O=208
    L=160
    A('s_nop 1')
    for U in range(2):
        acc=L+U*4
        A(f'v_mfma_f32_16x16x32_bf16 v[{acc}:{acc+3}], v[{ON}:{ON+3}], v[{P+U*8}:{P+U*8+3}], 0')
        A(f'v_mfma_f32_16x16x32_bf16 v[{acc}:{acc+3}], v[{ON}:{ON+3}], v[{P+U*8+4}:{P+U*8+7}], v[{acc}:{acc+3}]')
    A(f'''
    s_mov_b32 s34, {OM_PITCH}
    v_mul_lo_u32 v10, v9, s34
    v_lshl_add_u32 v10, v2, 4, v10
    s_lshl_b32 s35, s26, 8
    s_add_u32 s35, s35, {OM_OFF+1280}
    ''')
    for U in range(2):
        OA=16 if U==0 else 208
        for t in range(8):
            acc=OA+t*4
            A(f'v_mfma_f32_16x16x32_bf16 v[{acc}:{acc+3}], v[{VF+t*4}:{VF+t*4+3}], v[{P+U*8}:{P+U*8+3}], 0')
        for t in range(8):
            acc=OA+t*4
            A(f'v_mfma_f32_16x16x32_bf16 v[{acc}:{acc+3}], v[{VM+t*4}:{VM+t*4+3}], v[{P+U*8+4}:{P+U*8+7}], v[{acc}:{acc+3}]')
    A('s_nop 7')
    for U in range(2):
        OA=16 if U==0 else 208
        A(f'v_rcp_f32 v13, v{L+U*4}')
        A(f'v_sub_f32 v14, 1.0, v{11+U}')
        A(f'v_mul_f32 v13, v13, v14')
        for r in range(32): A(f'v_mul_f32 v{OA+r}, v{OA+r}, v13')
        if U==1: A(f's_add_u32 s35, s35, {8*OM_PITCH}')
        for a in range(4):
            d=48+a*4
            A(f'v_cvt_pk_bf16_f32 v{d}, v{OA+8*a}, v{OA+8*a+1}')
            A(f'v_cvt_pk_bf16_f32 v{d+1}, v{OA+8*a+2}, v{OA+8*a+3}')
            A(f'v_cvt_pk_bf16_f32 v{d+2}, v{OA+8*a+4}, v{OA+8*a+5}')
            A(f'v_cvt_pk_bf16_f32 v{d+3}, v{OA+8*a+6}, v{OA+8*a+7}')
            A(f'buffer_store_dwordx4 v[{d}:{d+3}], v10, {WSd}, s35 offen offset:{a*64} sc1')
        A('s_nop 1')
    A(f's_branch {endlabel}')

class GO:
    NSG=6
    LW=[16384*i for i in range(6)]; LA=[98304+8192*i for i in range(6)]
    vAd=2; vWd=4; vWd2=6; vAr=8; vBr=12; vBr2=14; FA=16; FB=24; ACC=64
    def __init__(s,A): s.A=A
    def setup(s):
        A=s.A
        A(f'''
        v_lshrrev_b32 v40, 3, v0
        s_mov_b32 s40, {OM_PITCH}
        v_mul_lo_u32 v40, v40, s40
        v_and_b32 v41, 7, v0
        v_lshrrev_b32 v42, 4, v0
        v_xor_b32 v43, v41, v42
        v_lshl_add_u32 v{s.vAd}, v43, 4, v40
        v_xor_b32 v43, 4, v43
        v_lshl_add_u32 v{s.vAd+1}, v43, 4, v40
        v_lshrrev_b32 v40, 4, v0             ; row&3
        v_and_b32 v41, 15, v0
        v_lshlrev_b32 v42, 2, v40
        v_xor_b32 v43, v41, v42
        v_mul_u32_u24 v44, 1280, v40
        v_lshl_add_u32 v{s.vWd}, v43, 4, v44
        s_and_b32 s41, s{sW}, 1
        s_lshl_b32 s41, s41, 12              ; 32 rows*128
        s_add_u32 s41, s41, {s.LA[0]}
        v_and_b32 v40, 31, v0
        v_lshlrev_b32 v41, 7, v40
        v_add_u32 v41, s41, v41
        v_lshrrev_b32 v42, 1, v40
        v_and_b32 v42, 7, v42
        v_lshrrev_b32 v43, 5, v0
        v_xor_b32 v42, v42, v43
        ''')
        for ks in range(4):
            A(f'v_xor_b32 v43, {2*ks}, v42'); A(f'v_lshl_add_u32 v{s.vAr+ks}, v43, 4, v41')
        A(f'''
        v_bfe_u32 v40, v0, 2, 2              ; r
        v_lshrrev_b32 v41, 5, v0
        v_lshlrev_b32 v41, 3, v41
        v_add_u32 v41, v41, v40
        v_lshlrev_b32 v41, 8, v41            ; *256
        v_bfe_u32 v42, v0, 4, 1
        v_lshl_add_u32 v41, v42, 5, v41
        v_and_b32 v42, 3, v0
        v_lshl_add_u32 v41, v42, 3, v41
        s_lshr_b32 s41, s{sW}, 1
        s_lshl_b32 s41, s41, 1               ; 2wn
        ''')
        for nt in range(2):
            A(f's_add_u32 s42, s41, {nt}'); A(f'v_xor_b32 v42, s42, v40'); A(f'v_lshl_add_u32 v{s.vBr+nt}, v42, 6, v41')
            A(f'v_add_u32 v{s.vBr2+nt}, 0x10000, v{s.vBr+nt}')
        A(f's_mul_i32 s45, s{sW}, {16*OM_PITCH}')
        A(f's_mov_b32 s46, s45'); A(f's_add_u32 s47, s45, {8*OM_PITCH}')
        A(f's_lshl_b32 s50, s{sW}, 11'); A(f's_lshl_b32 s51, s{sW}, 12')
        for j in range(4):
            A(f's_mul_i32 s{52+j}, s{sW}, {16*1280}'); A(f's_add_u32 s{52+j}, s{52+j}, {4*j*1280}')
            A(f's_lshr_b32 s44, s{sW}, 1'); A('s_lshl_b32 s44, s44, 5')
            A(f's_and_b32 s43, s{sW}, 1'); A('s_lshl_b32 s43, s43, 3')
            A('s_add_u32 s44, s44, s43'); A(f's_add_u32 s44, s44, {16*(j&1)+4*(j>>1)}')
            A(f's_mul_i32 s{56+j}, s44, 1280')
    def dma(s,buf,partB):
        out=[]
        for j in range(2):
            out.append([f's_add_u32 s44, s30, s{46+j}', f's_add_u32 m0, s50, {s.LA[buf]+j*1024}', f'buffer_load_dwordx4 v{s.vAd+j}, s[{S_WS}:{S_WS+3}], s44 offen sc1 lds'])
        for j in range(4):
            out.append([f's_add_u32 s44, s31, s{(56 if partB else 52)+j}', f's_add_u32 m0, s51, {s.LW[buf]+j*1024}', f'buffer_load_dwordx4 v{s.vWd}, s[{S_W}:{S_W+3}], s44 offen lds'])
        return out
    def compute(s,buf,fill,first):
        A=s.A
        def rd(ks,st):
            d=s.FA+st*4
            A.lds(f'ds_read_b128 v[{d}:{d+3}], v{s.vAr+ks} offset:{s.LA[buf]-s.LA[0]}',('A',ks))
            for nt in range(2):
                d=s.FB+st*8+nt*4
                for jh in range(2):
                    br=(s.vBr if buf<4 else s.vBr2)+nt; off=(s.LW[buf] if buf<4 else s.LW[buf]-65536)+(16*ks+4*jh)*256
                    A.lds(f'ds_read_b64_tr_b16 v[{d+2*jh}:{d+2*jh+1}], v{br} offset:{off}',('A',ks))
        rd(0,0)
        for ks in range(4):
            st=ks&1
            if ks<3: rd(ks+1,st^1)
            A.wl(('A',ks))
            for nt in range(2):
                acc=s.ACC+nt*16
                c='0' if (first and ks==0) else f'v[{acc}:{acc+15}]'
                A(f'v_mfma_f32_32x32x16_bf16 v[{acc}:{acc+15}], v[{s.FA+st*4}:{s.FA+st*4+3}], v[{s.FB+st*8+nt*4}:{s.FB+st*8+nt*4+3}], {c}')
                if fill:
                    for x in fill.pop(0): A(x)
        while fill:
            for x in fill.pop(0): A(x)

def job_o(A, name='JO', endlabel='L_end'):
    g=GO(A)
    A(f'{name}:')
    A(f'''
    s_mul_i32 s24, s{sJ}, 13108
    s_lshr_b32 s24, s24, 16              ; mb
    s_mul_i32 s25, s24, 5
    s_sub_u32 s25, s{sJ}, s25            ; nb
    ''')
    g.setup()
    A(f'''
    s_mul_i32 s30, s24, {64*OM_PITCH}
    s_add_u32 s30, s30, {OM_OFF}
    s_lshl_b32 s31, s25, 8
    s_mov_b32 s62, s31
    ''')
    srd(A,S_W,P_WO_A,P_WO_A+1,640*640*2)
    NI=74
    def adv(k):
        if k==9:
            return [[f's_add_u32 s30, s30, 128', f's_mov_b32 s31, s62', f's_mov_b32 s{S_W}, s{P_WO}', f's_and_b32 s{S_W+1}, s{P_WO+1}, 0xffff', f's_mov_b32 s{S_W+2}, {4096*640*2}']]
        return [[f's_add_u32 s30, s30, 128', f's_add_u32 s31, s31, {64*1280}']]
    NS=6; D=NS-1
    for k in range(D):
        for grp in g.dma(k,False):
            for x in grp: A(x)
        for x in adv(k)[0]: A(x)
    def it(k,dma_k,first=False):
        rem=min(D-1, NI-1-k)
        A(f's_waitcnt vmcnt({6*rem})')
        A('s_barrier')
        fill=[]
        if dma_k is not None: fill=g.dma(dma_k%NS,dma_k>=10)+adv(dma_k)
        A.lq=[]
        g.compute(k%NS,fill,first)
    for k in range(8): it(k,k+D,first=(k==0))
    A('s_mov_b32 s63, 10')
    A(f'{name}_loop:')
    for k in range(8,14): it(k,k+D)
    A('s_sub_u32 s63, s63, 1'); A('s_cmp_lg_u32 s63, 0'); A(f's_cbranch_scc1 {name}_loop')
    for k in range(68,74): it(k, k+D if k+D<NI else None)
    A('s_nop 15'); A('s_nop 3')
    srd(A,S_A,P_OUT,P_OUT+1,2048*640*2)
    A(f'''
    v_lshrrev_b32 v40, 5, v0
    v_and_b32 v41, 31, v0
    v_mul_u32_u24 v40, {4*1280}, v40
    v_lshl_add_u32 v40, v41, 1, v40
    s_lshl_b32 s26, s24, 6
    s_and_b32 s27, s{sW}, 1
    s_lshl_b32 s27, s27, 5
    s_add_u32 s26, s26, s27              ; token0
    s_mul_i32 s26, s26, 1280
    s_lshl_b32 s27, s25, 8
    s_add_u32 s26, s26, s27
    s_lshr_b32 s27, s{sW}, 1
    s_lshl_b32 s27, s27, 7
    s_add_u32 s26, s26, s27
    ''')
    for nt in range(2):
        for r in range(0,16,2):
            acc=g.ACC+nt*16+r
            A(f'v_cvt_pk_bf16_f32 v44, v{acc}, v{acc+1}')
            row0=8*(r>>2)+(r&3)
            A(f's_add_u32 s27, s26, {row0*1280+nt*64}')
            A(f'buffer_store_short v44, v40, s[{S_A}:{S_A+3}], s27 offen')
            A(f'buffer_store_short_d16_hi v44, v40, s[{S_A}:{S_A+3}], s27 offen offset:1280')
            A('s_nop 0')
    A(f's_branch {endlabel}')


def job_os(A, name='JOS', endlabel='L_end'):
    NS=4
    WB=NS*8192
    vAd=2; vWd=4; vWdP=5; vAr=8; vBr=12; FA=16; FB=24; ACC=32
    A(f'{name}:')
    A(f'''
    s_mul_i32 s24, s{sJ}, 3277
    s_lshr_b32 s24, s24, 16
    s_mul_i32 s25, s24, 20
    s_sub_u32 s25, s{sJ}, s25            ; ct
    s_mul_i32 s26, s{sW}, {WB}
    v_lshrrev_b32 v40, 3, v0
    s_mov_b32 s40, {OM_PITCH}
    v_mul_lo_u32 v40, v40, s40
    v_and_b32 v41, 7, v0
    v_lshrrev_b32 v42, 4, v0
    v_xor_b32 v43, v41, v42
    v_lshl_add_u32 v{vAd}, v43, 4, v40
    v_xor_b32 v43, 4, v43
    v_lshl_add_u32 v{vAd+1}, v43, 4, v40
    v_lshrrev_b32 v40, 2, v0             ; rr = 0..15
    v_and_b32 v41, 3, v0
    v_mul_u32_u24 v42, 1280, v40
    v_lshl_add_u32 v{vWd}, v41, 4, v42   ; natural
    v_bfe_u32 v42, v40, 2, 1
    v_lshlrev_b32 v42, 4, v42
    v_lshrrev_b32 v43, 3, v40
    v_lshl_add_u32 v42, v43, 2, v42
    v_and_b32 v43, 3, v40
    v_add_u32 v42, v42, v43
    v_mul_u32_u24 v42, 1280, v42
    v_lshl_add_u32 v{vWdP}, v41, 4, v42
    v_and_b32 v40, 31, v0
    v_lshlrev_b32 v41, 7, v40
    v_add_u32 v41, s26, v41
    v_lshrrev_b32 v42, 1, v40
    v_and_b32 v42, 7, v42
    v_lshrrev_b32 v43, 5, v0
    v_xor_b32 v42, v42, v43
    ''')
    for ks in range(4):
        A(f'v_xor_b32 v43, {2*ks}, v42'); A(f'v_lshl_add_u32 v{vAr+ks}, v43, 4, v41')
    A(f'''
    v_bfe_u32 v40, v0, 2, 2
    v_lshrrev_b32 v41, 5, v0
    v_lshlrev_b32 v41, 3, v41
    v_add_u32 v41, v41, v40
    v_lshlrev_b32 v41, 6, v41
    v_bfe_u32 v42, v0, 4, 1
    v_lshl_add_u32 v41, v42, 5, v41
    v_and_b32 v42, 3, v0
    v_lshl_add_u32 v41, v42, 3, v41
    v_add_u32 v{vBr}, s26, v41
    s_mul_i32 s30, s24, {32*OM_PITCH}
    s_add_u32 s30, s30, {OM_OFF}         ; A base (k=0)
    s_lshl_b32 s62, s25, 6
    ''')
    for r in range(16): A(f'v_mov_b32 v{ACC+r}, 0')
    def issue(stage, part):
        for j in range(4):
            A(f's_add_u32 s44, s31, {j*8*OM_PITCH}'); A(f's_add_u32 m0, s26, {stage*8192+j*1024}')
            A(f'buffer_load_dwordx4 v{vAd+(j&1)}, s[{S_WS}:{S_WS+3}], s44 offen sc1 lds')
        for j in range(4):
            off=(16*j*1280) if part==0 else (32*(j>>1)+8*(j&1))*1280
            A(f's_add_u32 s44, s33, {off}'); A(f's_add_u32 m0, s26, {stage*8192+4096+j*1024}')
            A(f'buffer_load_dwordx4 v{vWd if part==0 else vWdP}, s[{S_W}:{S_W+3}], s44 offen lds')
    def comp(stage):
        for ks in range(4):
            st=ks&1
            A(f'ds_read_b128 v[{FA+st*4}:{FA+st*4+3}], v{vAr+ks} offset:{stage*8192}')
            for jh in range(2): A(f'ds_read_b64_tr_b16 v[{FB+st*4+2*jh}:{FB+st*4+2*jh+1}], v{vBr} offset:{stage*8192+4096+(16*ks+4*jh)*64}')
            A('s_waitcnt lgkmcnt(0)')
            A(f'v_mfma_f32_32x32x16_bf16 v[{ACC}:{ACC+15}], v[{FA+st*4}:{FA+st*4+3}], v[{FB+st*4}:{FB+st*4+3}], v[{ACC}:{ACC+15}]')
    srd(A,S_W,P_WO_A,P_WO_A+1,640*640*2)
    for k in range(3):
        l=f'{name}_a{k}'
        A(f's_add_u32 s34, s{sW}, {4*k}')
        if k==2: A('s_cmp_ge_u32 s34, 10'); A(f's_cbranch_scc1 {l}')
        A('s_lshl_b32 s35, s34, 7'); A('s_add_u32 s31, s30, s35')
        A(f's_mul_i32 s35, s34, {64*1280}'); A('s_add_u32 s33, s62, s35')
        issue(k,0)
        if k==2: A(f'{l}:')
    A('s_waitcnt vmcnt(0)')
    comp(0); comp(1)
    A(f's_cmp_ge_u32 s{sW}, 2'); A(f's_cbranch_scc1 {name}_a3')
    comp(2)
    A(f'{name}_a3:')
    srd(A,S_W,P_WO,P_WO+1,4096*640*2)
    A(f'''
    s_lshl_b32 s35, s{sW}, 7
    s_add_u32 s31, s30, s35
    s_add_u32 s31, s31, 1280
    s_mul_i32 s35, s{sW}, {64*1280}
    s_add_u32 s33, s62, s35
    ''')
    def adv(): A('s_add_u32 s31, s31, 512'); A(f's_add_u32 s33, s33, {4*64*1280}')
    for m in range(NS-1): issue(m,1); adv()
    nfl=8*(NS-1)
    A('s_mov_b32 s63, 3')
    A(f'{name}_loop:')
    for st in range(NS):
        issue((st+NS-1)%NS,1); adv()
        A(f's_waitcnt vmcnt({nfl})')
        comp(st)
    A('s_sub_u32 s63, s63, 1'); A('s_cmp_lg_u32 s63, 0'); A(f's_cbranch_scc1 {name}_loop')
    issue(3,1); A(f's_waitcnt vmcnt({nfl})'); comp(0)
    A('s_waitcnt vmcnt(16)'); comp(1)
    A('s_waitcnt vmcnt(8)'); comp(2)
    A('s_waitcnt vmcnt(0)'); comp(3)
    A('s_nop 15'); A('s_nop 3')
    A(f'''
    s_barrier
    s_lshl_b32 s34, s{sW}, 12
    v_lshlrev_b32 v70, 2, v0
    v_add_u32 v71, s34, v70
    v_add_u32 v71, 131072, v71
    ''')
    for r in range(16): A(f'ds_write_b32 v71, v{ACC+r} offset:{r*256}')
    A(f'''
    s_waitcnt lgkmcnt(0)
    s_barrier
    s_lshl_b32 s34, s{sW}, 10
    v_add_u32 v71, s34, v70
    v_add_u32 v71, 131072, v71
    ''')
    for ww in range(4):
        for r in range(4): A(f'ds_read_b32 v{48+ww*4+r}, v71 offset:{ww*4096+r*256}')
    A('s_waitcnt lgkmcnt(0)')
    for r in range(4):
        A(f'v_add_f32 v{48+r}, v{48+r}, v{52+r}'); A(f'v_add_f32 v{56+r}, v{56+r}, v{60+r}'); A(f'v_add_f32 v{48+r}, v{48+r}, v{56+r}')
    srd(A,S_A,P_OUT,P_OUT+1,2048*640*2)
    A(f'''
    v_cvt_pk_bf16_f32 v74, v48, v49
    v_cvt_pk_bf16_f32 v75, v50, v51
    v_lshrrev_b32 v70, 5, v0
    v_and_b32 v71, 31, v0
    v_mul_u32_u24 v70, {4*1280}, v70
    v_lshl_add_u32 v70, v71, 1, v70
    s_lshl_b32 s26, s24, 5
    s_lshl_b32 s27, s{sW}, 3
    s_add_u32 s26, s26, s27
    s_mul_i32 s26, s26, 1280
    s_add_u32 s26, s26, s62
    buffer_store_short v74, v70, s[{S_A}:{S_A+3}], s26 offen
    buffer_store_short_d16_hi v74, v70, s[{S_A}:{S_A+3}], s26 offen offset:1280
    buffer_store_short v75, v70, s[{S_A}:{S_A+3}], s26 offen offset:2560
    buffer_store_short_d16_hi v75, v70, s[{S_A}:{S_A+3}], s26 offen offset:3840
    s_branch {endlabel}
    ''')


def job_op(A, name='JOP', endlabel='L_end', depfn=None):
    NSW=4
    NSA=8
    WB=32768
    vAd=6; vWd=4; vWdP=5; vAr=8; vBr=12; FA=16; ACC=32
    def breg(part,m): return ('a',16*m) if part==1 else ('v',80+16*m)
    A(f'{name}:')
    A(f'''
    s_mul_i32 s24, s{sJ}, 3277
    s_lshr_b32 s24, s24, 16              ; seg
    s_mul_i32 s25, s24, 20
    s_sub_u32 s25, s{sJ}, s25            ; ct
    s_mul_i32 s26, s{sW}, {WB}
    v_lshrrev_b32 v40, 3, v0
    s_mov_b32 s40, {OM_PITCH}
    v_mul_lo_u32 v40, v40, s40
    v_and_b32 v41, 7, v0
    v_lshrrev_b32 v42, 4, v0
    v_xor_b32 v43, v41, v42
    v_lshl_add_u32 v{vAd}, v43, 4, v40
    v_xor_b32 v43, 4, v43
    v_lshl_add_u32 v{vAd+1}, v43, 4, v40
    v_lshrrev_b32 v40, 2, v0
    v_and_b32 v41, 3, v0
    v_mul_u32_u24 v42, 1280, v40
    v_lshl_add_u32 v{vWd}, v41, 4, v42
    v_bfe_u32 v42, v40, 2, 1
    v_lshlrev_b32 v42, 4, v42
    v_lshrrev_b32 v43, 3, v40
    v_lshl_add_u32 v42, v43, 2, v42
    v_and_b32 v43, 3, v40
    v_add_u32 v42, v42, v43
    v_mul_u32_u24 v42, 1280, v42
    v_lshl_add_u32 v{vWdP}, v41, 4, v42
    v_and_b32 v40, 31, v0
    v_lshlrev_b32 v41, 7, v40
    v_add_u32 v41, s26, v41
    v_lshrrev_b32 v42, 1, v40
    v_and_b32 v42, 7, v42
    v_lshrrev_b32 v43, 5, v0
    v_xor_b32 v42, v42, v43
    ''')
    for ks in range(4):
        A(f'v_xor_b32 v43, {2*ks}, v42'); A(f'v_lshl_add_u32 v{vAr+ks}, v43, 4, v41')
    A(f'''
    v_bfe_u32 v40, v0, 2, 2
    v_lshrrev_b32 v41, 5, v0
    v_lshlrev_b32 v41, 3, v41
    v_add_u32 v41, v41, v40
    v_lshlrev_b32 v41, 6, v41
    v_bfe_u32 v42, v0, 4, 1
    v_lshl_add_u32 v41, v42, 5, v41
    v_and_b32 v42, 3, v0
    v_lshl_add_u32 v41, v42, 3, v41
    v_add_u32 v{vBr}, s26, v41
    s_mul_i32 s30, s24, {32*OM_PITCH}
    s_add_u32 s30, s30, {OM_OFF}
    s_lshl_b32 s62, s25, 6
    ''')
    def wissue(slot,part):
        for j in range(4):
            off=(16*j*1280) if part==0 else (32*(j>>1)+8*(j&1))*1280
            A(f's_add_u32 s44, s33, {off}'); A(f's_add_u32 m0, s26, {slot*4096+j*1024}')
            A(f'buffer_load_dwordx4 v{vWd if part==0 else vWdP}, s[{S_W}:{S_W+3}], s44 offen lds')
    def wcons(slot,part,m):
        kind,b=breg(part,m)
        for ks in range(4):
            for jh in range(2): A(f'ds_read_b64_tr_b16 {kind}[{b+4*ks+2*jh}:{b+4*ks+2*jh+1}], v{vBr} offset:{slot*4096+(16*ks+4*jh)*64}')
        A('s_waitcnt lgkmcnt(0)')
    srd(A,S_W,P_WO_A,P_WO_A+1,640*640*2)
    for m in range(3):
        A(f's_add_u32 s34, s{sW}, {4*m}'); A(f's_mul_i32 s35, s34, {64*1280}'); A('s_add_u32 s33, s62, s35')
        wissue(m,0)
    A('s_waitcnt vmcnt(0)')
    for m in range(3): wcons(m,0,m)
    srd(A,S_W,P_WO,P_WO+1,4096*640*2)
    A(f's_mul_i32 s35, s{sW}, {64*1280}'); A('s_add_u32 s33, s62, s35')
    def wadv(): A(f's_add_u32 s33, s33, {4*64*1280}')
    for m in range(NSW-1): wissue(m,1); wadv()
    for m in range(16):
        if m+NSW-1<16:
            wissue((m+NSW-1)%NSW,1); wadv()
        rem=min(NSW-1,15-m)
        A(f's_waitcnt vmcnt({4*rem})')
        wcons(m%NSW,1,m)
    if depfn: depfn(A)
    seq=[(0,m) for m in range(3)]+[(1,m) for m in range(16)]
    def aissue(k):
        part,m=seq[k]
        if part==0:
            A(f's_add_u32 s34, s{sW}, {4*m}'); A('s_min_u32 s34, s34, 9'); A('s_lshl_b32 s35, s34, 7')
        else:
            A(f's_lshl_b32 s35, s{sW}, 7'); A(f's_add_u32 s35, s35, {1280+512*m}')
        A('s_add_u32 s31, s30, s35')
        for j in range(4):
            A(f's_add_u32 s44, s31, {j*8*OM_PITCH}'); A(f's_add_u32 m0, s26, {(k%NSA)*4096+j*1024}')
            A(f'buffer_load_dwordx4 v{vAd+(j&1)}, s[{S_WS}:{S_WS+3}], s44 offen sc1 lds')
    n=len(seq)
    for k in range(NSA-1): aissue(k)
    for k in range(n):
        if k+NSA-1<n: aissue(k+NSA-1)
        rem=min(NSA-1,n-1-k)
        A(f's_waitcnt vmcnt({4*rem})')
        part,m=seq[k]; kind,b=breg(part,m)
        for ks in range(4): A(f'ds_read_b128 v[{FA+4*ks}:{FA+4*ks+3}], v{vAr+ks} offset:{(k%NSA)*4096}')
        for ks in range(4):
            A(f's_waitcnt lgkmcnt({3-ks})')
            c='0' if (k==0 and ks==0) else f'v[{ACC}:{ACC+15}]'
            A(f'v_mfma_f32_32x32x16_bf16 v[{ACC}:{ACC+15}], v[{FA+4*ks}:{FA+4*ks+3}], {kind}[{b+4*ks}:{b+4*ks+3}], {c}')
    A('s_nop 15'); A('s_nop 3')
    A(f'''
    s_lshl_b32 s34, s{sW}, 12
    v_lshlrev_b32 v70, 2, v0
    v_add_u32 v71, s34, v70
    v_add_u32 v71, 131072, v71
    ''')
    for r in range(16): A(f'ds_write_b32 v71, v{ACC+r} offset:{r*256}')
    A(f'''
    s_waitcnt lgkmcnt(0)
    s_barrier
    s_lshl_b32 s34, s{sW}, 10
    v_add_u32 v71, s34, v70
    v_add_u32 v71, 131072, v71
    ''')
    for ww in range(4):
        for r in range(4): A(f'ds_read_b32 v{48+ww*4+r}, v71 offset:{ww*4096+r*256}')
    A('s_waitcnt lgkmcnt(0)')
    for r in range(4):
        A(f'v_add_f32 v{48+r}, v{48+r}, v{52+r}'); A(f'v_add_f32 v{56+r}, v{56+r}, v{60+r}'); A(f'v_add_f32 v{48+r}, v{48+r}, v{56+r}')
    srd(A,S_A,P_OUT,P_OUT+1,2048*640*2)
    A(f'''
    v_cvt_pk_bf16_f32 v74, v48, v49
    v_cvt_pk_bf16_f32 v75, v50, v51
    v_lshrrev_b32 v70, 5, v0
    v_and_b32 v71, 31, v0
    v_mul_u32_u24 v70, {4*1280}, v70
    v_lshl_add_u32 v70, v71, 1, v70
    s_lshl_b32 s26, s24, 5
    s_lshl_b32 s27, s{sW}, 3
    s_add_u32 s26, s26, s27
    s_mul_i32 s26, s26, 1280
    s_add_u32 s26, s26, s62
    buffer_store_short v74, v70, s[{S_A}:{S_A+3}], s26 offen
    buffer_store_short_d16_hi v74, v70, s[{S_A}:{S_A+3}], s26 offen offset:1280
    buffer_store_short v75, v70, s[{S_A}:{S_A+3}], s26 offen offset:2560
    buffer_store_short_d16_hi v75, v70, s[{S_A}:{S_A+3}], s26 offen offset:3840
    s_branch {endlabel}
    ''')
```

```python
import sys,os; sys.path.insert(0,'gen')
from asmlib import *
from layout import *
import gemm, jobs_a, jobs_c
import importlib
chain7=importlib.import_module(os.environ.get("CHAIN","chain9"))
from gemm import S_WS, sW, sJ
REF='gated_mix__linear_kernel_hedgehog__memory_aug_recurrent_mem_tr__prompt.s.ref'
HDR=open(REF).read().split('; Override launch geometry')[0] if os.path.exists(REF) else ''
S_D=64
sSig=68
sSeen=69
sFail=70
WS=f's[{S_WS}:{S_WS+3}]'; DB=f's[{S_D}:{S_D+3}]'

def wait_flag(A, off_reg, target, lab, sleep=4):
    A(f'''
    s_cmp_lg_u32 s{sW}, 0
    s_cbranch_scc1 {lab}_b
    s_mov_b32 s71, 0
    v_mov_b32 v2, 0
    {lab}_p:
    buffer_load_dword v1, v2, {WS}, s{off_reg} offen sc1
    s_waitcnt vmcnt(0)
    v_readfirstlane_b32 s96, v1
    s_add_u32 s71, s71, 1
    s_cmp_ge_u32 s71, 2000000
    s_cbranch_scc1 {lab}_b
    s_cmp_ge_u32 s96, {target}
    s_cbranch_scc1 {lab}_b
    s_sleep {sleep}
    s_branch {lab}_p
    {lab}_b:
    s_barrier
    ''')
def ensure_flagrdy(A, lab):
    A(f'''
    s_cmp_lg_u32 s{sSeen}, 0
    s_cbranch_scc1 {lab}_d
    s_mov_b32 s71, 0
    v_mov_b32 v2, {D_FLAGRDY}
    {lab}_p:
    buffer_load_dword v1, v2, {DB}, 0 offen sc1
    s_waitcnt vmcnt(0)
    v_readfirstlane_b32 s96, v1
    s_add_u32 s71, s71, 1
    s_cmp_ge_u32 s71, 2000000
    s_cbranch_scc1 {lab}_s
    s_cmp_eq_u32 s96, 0
    s_cbranch_scc1 {lab}_p
    {lab}_s:
    s_mov_b32 s{sSeen}, 1
    {lab}_d:
    ''')

PROF_OFF=0x6900000
PROF=[False]
def worker(A, jobs):
    A('L_worker:')
    gemm.common_prologue(A, lane_done=True)
    A(f'''
    s_mov_b32 s{S_D}, s6
    s_and_b32 s{S_D+1}, s7, 0xffff
    s_mov_b32 s{S_D+2}, 256
    s_mov_b32 s{S_D+3}, 0x20000
    s_mov_b32 s{sSeen}, 0
    PFBLOCK
    L_next:
    s_cmp_lg_u32 s{sW}, 0
    s_cbranch_scc1 L_q_b
    v_mov_b32 v1, 1
    v_mov_b32 v2, {D_QUEUE}
    s_mov_b64 exec, 1
    buffer_atomic_add v1, v2, {DB}, 0 offen sc0
    s_waitcnt vmcnt(0)
    v_mov_b32 v2, 163836
    ds_write_b32 v2, v1
    s_waitcnt lgkmcnt(0)
    s_mov_b64 exec, -1
    L_q_b:
    s_barrier
    v_mov_b32 v2, 163836
    ds_read_b32 v1, v2
    s_waitcnt lgkmcnt(0)
    v_readfirstlane_b32 s97, v1
    s_barrier
    ''')
    if PROF[0]:
        A('s_mov_b32 s99, s97'); A('s_memrealtime s[100:101]'); A('s_waitcnt lgkmcnt(0)'); A('s_mov_b32 s3, s100')
    for (nm,cnt,setup,lab) in jobs:
        A(f's_cmp_lt_u32 s97, {cnt}')
        A(f's_cbranch_scc1 L_set_{nm}')
        A(f's_sub_u32 s97, s97, {cnt}')
    A('s_branch L_end')
    for (nm,cnt,setup,lab) in jobs:
        A(f'L_set_{nm}:')
        setup(A)
        A(f's_branch {lab}')
    A(f'''
    L_jobdone:
    s_waitcnt vmcnt(0) lgkmcnt(0)
    s_barrier
    s_cmp_lg_u32 s{sW}, 0
    s_cbranch_scc1 L_next
    ''')
    if PROF[0]:
        A(f'''s_memrealtime s[100:101]
        s_waitcnt lgkmcnt(0)
        v_mov_b32 v4, s3
        v_mov_b32 v5, s100
        s_lshl_b32 s96, s99, 3
        s_add_u32 s96, s96, {PROF_OFF}
        v_mov_b32 v2, 0
        s_mov_b64 exec, 1
        buffer_store_dwordx2 v[4:5], v2, {WS}, s96 offen
        s_mov_b64 exec, -1''')
    ensure_flagrdy(A,'L_fr')
    A(f'''
    v_mov_b32 v1, 1
    v_mov_b32 v2, 0
    s_mov_b64 exec, 1
    buffer_atomic_add v1, v2, {WS}, s{sSig} offen
    s_mov_b64 exec, -1
    s_branch L_next
    ''')

def fl(k): return FLG_OFF+128*k
def dep(A, k, target, lab, sleep=4):
    l2=lab+'_e'
    A(f's_cmp_lg_u32 s{sW}, 0'); A(f's_cbranch_scc1 {l2}')
    ensure_flagrdy(A,lab+'_fr')
    A(f'{l2}:')
    A(f's_mov_b32 s98, {fl(k)}')
    wait_flag(A,98,target,lab,sleep)

def gen(full=True, nsmall=2, prof=False, pf=True, pre15=True, op_at=13, early14=False, cpf=0, **kw):
    PROF[0]=prof
    A=Sched()
    def s_prep(A):
        A(f's_mov_b32 s{sJ}, s97'); A(f's_mov_b32 s{sSig}, {fl(F_PREP)}')
    def s_kv(A):
        A(f'''s_lshr_b32 s24, s97, 5
        s_bfe_u32 s25, s97, 0x10004
        s_and_b32 s26, s97, 15
        s_lshl_b32 s{sJ}, s25, 8
        s_lshl_b32 s27, s24, 4
        s_add_u32 s{sJ}, s{sJ}, s27
        s_add_u32 s{sJ}, s{sJ}, s26
        s_lshl_b32 s27, s24, 7
        s_add_u32 s{sSig}, s27, {fl(F_KV)}''')
    def s_q(A):
        A(f'''s_add_u32 s{sJ}, s97, 512
        s_lshr_b32 s27, s97, 4
        s_lshl_b32 s27, s27, 7
        s_add_u32 s{sSig}, s27, {fl(F_Q)}''')
    def s_a1(A):
        dep(A,F_PREP,64,'L_da1')
        A(f's_mov_b32 s{sJ}, s97'); A(f's_mov_b32 s{sSig}, {fl(F_A1)}')
    def s_kvr(A):
        dep(A,F_A1,128,'L_dkvr')
        A(f's_mov_b32 s{sJ}, s97'); A(f's_mov_b32 s{sSig}, {fl(F_KVR)}')
    def s_a2(A):
        dep(A,F_KVR,32,'L_da2')
        A(f'''s_mov_b32 s{sJ}, s97
        s_lshr_b32 s27, s97, 3
        s_lshl_b32 s27, s27, 7
        s_add_u32 s{sSig}, s27, {fl(F_A2)}''')
    def s_c(tb):
        def f(A):
            dep(A,F_Q+tb,16,f'L_dc{tb}q'); dep(A,F_KV+tb,32,f'L_dc{tb}k')
            A(f's_add_u32 s{sJ}, s97, {32*tb}'); A(f's_mov_b32 s{sSig}, {fl(F_C+tb)}')
        return f
    def s_o(tb):
        def f(A):
            dep(A,F_C+tb,32,f'L_do{tb}c'); dep(A,F_A2+tb,8,f'L_do{tb}a')
            A(f's_add_u32 s{sJ}, s97, {10*tb}'); A(f's_mov_b32 s{sSig}, {fl(F_N)}')
        return f
    def s_os(tb):
        def f(A):
            dep(A,F_C+tb,32,f'L_ds{tb}c'); dep(A,F_A2+tb,8,f'L_ds{tb}a')
            A(f's_add_u32 s{sJ}, s97, {80*tb}'); A(f's_mov_b32 s{sSig}, {fl(F_N)}')
        return f
    jobs=[('prep',64,s_prep,'JPREP'),('kv',512,s_kv,'JP'),('a1',128,s_a1,'JA1'),('q',256,s_q,'JP'),('kvr',32,s_kvr,'JKVR'),('a2',128,s_a2,'JA2')]
    if full:
        def s_op(A):
            A(f's_add_u32 s{sJ}, s97, {80*15}'); A(f's_mov_b32 s{sSig}, {fl(F_N)}')
        def oj(t): return (f'o{t}',80,s_os(t),'JOS') if t>=16-nsmall else (f'o{t}',10,s_o(t),'JO')
        for tb in range(16):
            if tb==15 and early14: jobs.append(oj(14))
            jobs.append((f'c{tb}',32,s_c(tb),'JC'))
            if tb==op_at and pre15: jobs.append(('o15',80,s_op,'JOP'))
            if tb>=1 and not (tb==15 and early14): jobs.append(oj(tb-1))
        if not pre15: jobs.append(('o15',80,s_os(15),'JOS'))
        elif op_at>15: jobs.append(('o15',80,s_op,'JOP'))
        import json; json.dump([(j[0],j[1]) for j in jobs],open('joblist.json','w'))
        kw=dict(kw,prog=True,kvflag='sc1')
    A.raw(kernel_header('main_kernel'))
    if cpf:
        A(f'''
        s_getpc_b64 s[36:37]
        L_pc0:
        s_sub_u32 s36, s36, L_pc0-main_kernel
        s_subb_u32 s37, s37, 0
        v_lshlrev_b32 v1, 7, v0
        v_lshrrev_b32 v2, 6, v0
        s_nop 0
        v_readfirstlane_b32 s38, v2
        s_lshl_b32 s38, s38, 8
        s_add_u32 m0, s38, 162560
        s_nop 0
        ''')
        for r in range(cpf):
            A('v_cmp_gt_u32 vcc, L_codeend-main_kernel, v1')
            A('s_and_saveexec_b64 s[40:41], vcc')
            A(f's_cbranch_execz L_cpf_done')
            A('global_load_lds_dword v1, s[36:37]')
            A('s_mov_b64 exec, s[40:41]')
            A('v_add_u32 v1, 0x8000, v1')
        A('L_cpf_done:')
        A('s_mov_b64 exec, -1')
    chain7.gen_body(A, other='L_worker', merged=True, **kw)
    worker(A,jobs)
    for fn,lab in ((gemm.job_proj,'JP'),(jobs_a.job_prep,'JPREP'),(jobs_a.job_a1,'JA1'),(jobs_a.job_kvred,'JKVR'),(jobs_a.job_a2,'JA2')):
        A.lq=[]; A.vq=[]
        fn(A,name=lab,endlabel='L_jobdone')
    if full:
        A.lq=[]; A.vq=[]; jobs_c.job_c(A,name='JC',endlabel='L_jobdone',merged=True)
        A.lq=[]; A.vq=[]; jobs_c.job_o(A,name='JO',endlabel='L_jobdone')
        A.lq=[]; A.vq=[]; jobs_c.job_os(A,name='JOS',endlabel='L_jobdone')
        def dep15(A):
            dep(A,F_A2+15,8,'L_dp15a'); dep(A,F_C+15,32,'L_dp15c',sleep=1)
        if pre15:
            A.lq=[]; A.vq=[]; jobs_c.job_op(A,name='JOP',endlabel='L_jobdone',depfn=dep15)
    A('L_codeend:')
    A('s_endpgm')
    A.raw(kernel_desc('main_kernel'))
    main=A.text()
    pfc=''
    if pf:
        B=Sched()
        B(f'''
        s_cmp_eq_u32 s{sW}, 0
        s_cselect_b32 s24, s82, s84
        s_cselect_b32 s25, s83, s85
        s_cmp_eq_u32 s{sW}, 2
        s_cselect_b32 s24, s86, s24
        s_cselect_b32 s25, s87, s25
        s_cmp_eq_u32 s{sW}, 3
        s_cselect_b32 s24, s88, s24
        s_cselect_b32 s25, s89, s25
        s_mov_b32 s12, s24
        s_and_b32 s13, s25, 0xffff
        s_mov_b32 s14, 5242880
        s_mov_b32 s15, 0x20000
        s_mul_i32 s26, s2, 20480
        v_lshlrev_b32 v1, 7, v0
        s_lshl_b32 s27, s{sW}, 8
        s_add_u32 m0, s27, 162560
        s_nop 0
        buffer_load_dword v1, s[12:15], s26 offen lds
        s_add_u32 s26, s26, 8192
        buffer_load_dword v1, s[12:15], s26 offen lds
        s_add_u32 s26, s26, 8192
        s_mov_b32 exec_hi, 0
        buffer_load_dword v1, s[12:15], s26 offen lds
        s_mov_b64 exec, -1
        ''')
        pfc=B.text()
    main=main.replace('  PFBLOCK\n',pfc)
    if full:
        return HDR+'; @launch kernel=main_kernel grid=(256,1,1) block=(256,1,1) lds=163840\n.amdgcn_target "amdgcn-amd-amdhsa--gfx950"\n.text\n'+main
    import build_v1
    t2,n2=build_v1.simple_kernel('post_kernel',[(512,jobs_c.job_c,'JC')])
    t3,n3=build_v1.simple_kernel('out_kernel',[(160,jobs_c.job_o,'JO')])
    out=HDR
    out+='; @launch kernel=main_kernel grid=(256,1,1) block=(256,1,1) lds=163840\n'
    out+=f'; @launch kernel=post_kernel grid=({n2},1,1) block=(256,1,1) lds=0\n'
    out+=f'; @launch kernel=out_kernel grid=({n3},1,1) block=(256,1,1) lds=73728\n'
    out+='.amdgcn_target "amdgcn-amd-amdhsa--gfx950"\n.text\n'+main+t2+t3
    return out
if __name__=='__main__':
    kw=eval(sys.argv[2]) if len(sys.argv)>2 else {}
    open(sys.argv[1] if len(sys.argv)>1 else 'v2.s','w').write(gen(**kw))
```

```python
from asmlib import *
from layout import *
import layout

from gemm import *

def job_c(A, name='JC', endlabel='L_end', merged=False):
    A(f'{name}:')
    A(f'''
    s_lshl_b32 s24, s{sJ}, 2
    s_add_u32 s24, s24, s{sW}            ; task
    s_lshr_b32 s25, s24, 5               ; seg
    s_and_b32 s26, s24, 31               ; head
    s_lshl_b32 s27, s24, 13              ; task*8192
    s_lshl_b32 s28, s24, 11              ; task*2048
    s_add_u32 s29, s27, {QX_OFF}
    s_add_u32 s30, s27, {KX_OFF}
    s_add_u32 s31, s27, {VX_OFF}
    s_add_u32 s32, s28, {KM_OFF}
    s_add_u32 s33, s28, {VM_OFF}
    v_lshlrev_b32 v1, 4, v0              ; lane*16
    v_lshrrev_b32 v2, 4, v0              ; g
    v_and_b32 v3, 15, v0                 ; n / i
    ''')
    WSd=f's[{S_WS}:{S_WS+3}]'
    QF=16
    KF=48
    KM=80
    VF=96
    VM=128
    def big(off): return off
    for U in range(2):
        A(f's_add_u32 s34, s29, {U*4096}')
        for ks in range(4): A(f'buffer_load_dwordx4 v[{QF+(U*4+ks)*4}:{QF+(U*4+ks)*4+3}], v1, {WSd}, s34 offen offset:{ks*1024} sc1')
    for T in range(2):
        A(f's_add_u32 s34, s30, {T*4096}')
        for ks in range(4): A(f'buffer_load_dwordx4 v[{KF+(T*4+ks)*4}:{KF+(T*4+ks)*4+3}], v1, {WSd}, s34 offen offset:{ks*1024} sc1')
    for h in range(2):
        A(f's_add_u32 s34, s31, {h*4096}')
        for t in range(4): A(f'buffer_load_dwordx4 v[{VF+(h*4+t)*4}:{VF+(h*4+t)*4+3}], v1, {WSd}, s34 offen offset:{t*1024} sc1')
    for r in range(VM,VM+32,2): A(f'v_mov_b64 v[{r}:{r+1}], 0')
    if merged:
        A(f'''
        s_lshl_b32 s36, s26, 10
        s_lshl_b32 s37, s25, 4
        s_add_u32 s36, s36, s37
        s_add_u32 s36, s36, {PROG_OFF}
        s_add_u32 s37, s36, {32*1024}
        s_mov_b32 s38, 0
        v_mov_b32 v4, 0
        {name}_pw:
        buffer_load_dword v5, v4, {WSd}, s36 offen sc1
        buffer_load_dword v6, v4, {WSd}, s37 offen sc1
        s_waitcnt vmcnt(0)
        v_and_b32 v5, v5, v6
        s_nop 0
        v_readfirstlane_b32 s39, v5
        s_add_u32 s38, s38, 1
        s_cmp_ge_u32 s38, 4000000
        s_cbranch_scc1 {name}_pd
        s_cmp_lg_u32 s39, 0
        s_cbranch_scc1 {name}_pd
        s_sleep 2
        s_branch {name}_pw
        {name}_pd:
        ''')
    A(f'''
    buffer_load_dwordx4 v[{KM}:{KM+3}], v1, {WSd}, s32 offen sc1
    buffer_load_dwordx4 v[{KM+4}:{KM+7}], v1, {WSd}, s32 offen offset:1024 sc1
    s_lshl_b32 s38, s{sW}, 11
    v_add_u32 v4, s38, v1
    s_waitcnt vmcnt(0)
    ds_write_b128 v4, v[{KM}:{KM+3}]
    ds_write_b128 v4, v[{KM+4}:{KM+7}] offset:1024
    v_lshrrev_b32 v13, 1, v2
    v_lshlrev_b32 v13, 4, v13
    v_and_b32 v14, 1, v2
    v_lshl_add_u32 v13, v14, 2, v13
    v_bfe_u32 v14, v0, 2, 2
    v_add_u32 v13, v13, v14
    v_lshlrev_b32 v13, 4, v13
    v_and_b32 v14, 1, v0
    v_lshl_add_u32 v13, v14, 3, v13
    v_add_u32 v13, s38, v13
    s_waitcnt lgkmcnt(0)
    ''')
    for ks in range(4):
        for jh in range(2): A(f'ds_read_b64_tr_b16 v[{KM+ks*4+2*jh}:{KM+ks*4+2*jh+1}], v13 offset:{(32*ks+8*jh)*16}')
    A('s_waitcnt lgkmcnt(0)')
    A(f'''
    v_lshlrev_b32 v5, 4, v3
    v_lshl_add_u32 v5, v2, 3, v5
    s_mov_b32 exec_hi, 0
    ''')
    for t in range(8): A(f'buffer_load_dwordx2 v[{VM+t*4}:{VM+t*4+1}], v5, {WSd}, s33 offen offset:{t*256} sc1')
    A('s_mov_b64 exec, -1')
    A(f'''
    v_lshrrev_b32 v6, 1, v2
    v_lshlrev_b32 v6, 4, v6
    v_and_b32 v7, 1, v2
    v_lshl_add_u32 v6, v7, 2, v6
    v_lshrrev_b32 v7, 3, v3
    v_lshlrev_b32 v7, 4, v7
    v_bfe_u32 v8, v3, 2, 1
    v_lshl_add_u32 v7, v8, 2, v7
    v_and_b32 v8, 3, v3
    v_add_u32 v7, v7, v8
    v_sub_u32 v8, v7, v6
    s_lshl_b32 s34, s25, 5
    v_add_u32 v9, s34, v7
    v_lshlrev_b32 v10, 2, v9
    s_mov_b32 s35, {G_OFF}
    buffer_load_dword v11, v10, {WSd}, s35 offen sc1
    buffer_load_dword v12, v10, {WSd}, s35 offen offset:32 sc1
    s_mov_b32 s60, 0x3e0293ee
    s_mov_b32 s61, 0xff800000             ; -inf
    s_waitcnt vmcnt(0)
    ''')
    S=160
    for U in range(2):
        for T in range(3):
            acc=S+(U*3+T)*4
            for ks in range(4):
                a=(KF+(T*4+ks)*4) if T<2 else KM+ks*4
                c='0' if ks==0 else f'v[{acc}:{acc+3}]'
                A(f'v_mfma_f32_16x16x32_bf16 v[{acc}:{acc+3}], v[{a}:{a+3}], v[{QF+(U*4+ks)*4}:{QF+(U*4+ks)*4+3}], {c}')
    A('s_nop 7')
    A('v_cmp_gt_u32 s[62:63], 2, v2')
    P=184
    ON=200
    for r in range(4): A(f'v_mov_b32 v{ON+r}, 0x3f803f80')
    for U in range(2):
        sx=[S+(U*3+T)*4+r for T in range(2) for r in range(4)]
        sm=[S+(U*3+2)*4+r for r in range(4)]
        for T in range(2):
            for r in range(4):
                A(f'v_cmp_le_i32 vcc, {8*T+r-8*U}, v8')
                A('s_nop 1') if False else None
                A(f'v_mov_b32 v13, s61')
                A('s_nop 0')
                A(f'v_cndmask_b32 v{sx[T*4+r]}, v13, v{sx[T*4+r]}, vcc')
        for r in range(4):
            A(f'v_mov_b32 v13, s61')
            A(f'v_cndmask_b32_e64 v{sm[r]}, v13, v{sm[r]}, s[62:63]')
        al=sx+sm
        A(f'v_max3_f32 v13, v{al[0]}, v{al[1]}, v{al[2]}')
        A(f'v_max3_f32 v14, v{al[3]}, v{al[4]}, v{al[5]}')
        A(f'v_max3_f32 v13, v13, v{al[6]}, v{al[7]}')
        A(f'v_max3_f32 v14, v14, v{al[8]}, v{al[9]}')
        A(f'v_max3_f32 v13, v13, v{al[10]}, v{al[11]}')
        A('v_max_f32 v13, v13, v14')
        for sw in ('32','16'):
            A('v_mov_b32 v14, v13'); A('s_nop 1'); A(f'v_permlane{sw}_swap_b32 v13, v14'); A('v_max_f32 v13, v13, v14')
        A('v_mul_f32 v13, s60, v13')
        for r in al: A(f'v_fma_f32 v{r}, v{r}, s60, -v13')
        for r in al: A(f'v_exp_f32 v{r}, v{r}')
        A('s_nop 0')
        for i in range(4): A(f'v_cvt_pk_bf16_f32 v{P+U*8+i}, v{sx[2*i]}, v{sx[2*i+1]}')
        for i in range(2): A(f'v_cvt_pk_bf16_f32 v{P+U*8+4+i}, v{sm[2*i]}, v{sm[2*i+1]}')
        A(f'v_mov_b64 v[{P+U*8+6}:{P+U*8+7}], 0')
    O=208
    L=160
    A('s_nop 1')
    for U in range(2):
        acc=L+U*4
        A(f'v_mfma_f32_16x16x32_bf16 v[{acc}:{acc+3}], v[{ON}:{ON+3}], v[{P+U*8}:{P+U*8+3}], 0')
        A(f'v_mfma_f32_16x16x32_bf16 v[{acc}:{acc+3}], v[{ON}:{ON+3}], v[{P+U*8+4}:{P+U*8+7}], v[{acc}:{acc+3}]')
    A(f'''
    s_mov_b32 s34, {OM_PITCH}
    v_mul_lo_u32 v10, v9, s34
    v_lshl_add_u32 v10, v2, 4, v10
    s_lshl_b32 s35, s26, 8
    s_add_u32 s35, s35, {OM_OFF+1280}
    ''')
    for U in range(2):
        OA=16 if U==0 else 208
        for t in range(8):
            acc=OA+t*4
            A(f'v_mfma_f32_16x16x32_bf16 v[{acc}:{acc+3}], v[{VF+t*4}:{VF+t*4+3}], v[{P+U*8}:{P+U*8+3}], 0')
        for t in range(8):
            acc=OA+t*4
            A(f'v_mfma_f32_16x16x32_bf16 v[{acc}:{acc+3}], v[{VM+t*4}:{VM+t*4+3}], v[{P+U*8+4}:{P+U*8+7}], v[{acc}:{acc+3}]')
    A('s_nop 7')
    for U in range(2):
        OA=16 if U==0 else 208
        A(f'v_rcp_f32 v13, v{L+U*4}')
        A(f'v_sub_f32 v14, 1.0, v{11+U}')
        A(f'v_mul_f32 v13, v13, v14')
        for r in range(32): A(f'v_mul_f32 v{OA+r}, v{OA+r}, v13')
        if U==1: A(f's_add_u32 s35, s35, {8*OM_PITCH}')
        for a in range(4):
            d=48+a*4
            A(f'v_cvt_pk_bf16_f32 v{d}, v{OA+8*a}, v{OA+8*a+1}')
            A(f'v_cvt_pk_bf16_f32 v{d+1}, v{OA+8*a+2}, v{OA+8*a+3}')
            A(f'v_cvt_pk_bf16_f32 v{d+2}, v{OA+8*a+4}, v{OA+8*a+5}')
            A(f'v_cvt_pk_bf16_f32 v{d+3}, v{OA+8*a+6}, v{OA+8*a+7}')
            A(f'buffer_store_dwordx4 v[{d}:{d+3}], v10, {WSd}, s35 offen offset:{a*64} sc1')
        A('s_nop 1')
    A(f's_branch {endlabel}')

class GO:
    NSG=6
    LW=[16384*i for i in range(6)]; LA=[98304+8192*i for i in range(6)]
    vAd=2; vWd=4; vWd2=6; vAr=8; vBr=12; vBr2=14; FA=16; FB=24; ACC=64
    def __init__(s,A): s.A=A
    def setup(s):
        A=s.A
        A(f'''
        v_lshrrev_b32 v40, 3, v0
        s_mov_b32 s40, {OM_PITCH}
        v_mul_lo_u32 v40, v40, s40
        v_and_b32 v41, 7, v0
        v_lshrrev_b32 v42, 4, v0
        v_xor_b32 v43, v41, v42
        v_lshl_add_u32 v{s.vAd}, v43, 4, v40
        v_xor_b32 v43, 4, v43
        v_lshl_add_u32 v{s.vAd+1}, v43, 4, v40
        v_lshrrev_b32 v40, 4, v0             ; row&3
        v_and_b32 v41, 15, v0
        v_lshlrev_b32 v42, 2, v40
        v_xor_b32 v43, v41, v42
        v_mul_u32_u24 v44, 1280, v40
        v_lshl_add_u32 v{s.vWd}, v43, 4, v44
        s_and_b32 s41, s{sW}, 1
        s_lshl_b32 s41, s41, 12              ; 32 rows*128
        s_add_u32 s41, s41, {s.LA[0]}
        v_and_b32 v40, 31, v0
        v_lshlrev_b32 v41, 7, v40
        v_add_u32 v41, s41, v41
        v_lshrrev_b32 v42, 1, v40
        v_and_b32 v42, 7, v42
        v_lshrrev_b32 v43, 5, v0
        v_xor_b32 v42, v42, v43
        ''')
        for ks in range(4):
            A(f'v_xor_b32 v43, {2*ks}, v42'); A(f'v_lshl_add_u32 v{s.vAr+ks}, v43, 4, v41')
        A(f'''
        v_bfe_u32 v40, v0, 2, 2              ; r
        v_lshrrev_b32 v41, 5, v0
        v_lshlrev_b32 v41, 3, v41
        v_add_u32 v41, v41, v40
        v_lshlrev_b32 v41, 8, v41            ; *256
        v_bfe_u32 v42, v0, 4, 1
        v_lshl_add_u32 v41, v42, 5, v41
        v_and_b32 v42, 3, v0
        v_lshl_add_u32 v41, v42, 3, v41
        s_lshr_b32 s41, s{sW}, 1
        s_lshl_b32 s41, s41, 1               ; 2wn
        ''')
        for nt in range(2):
            A(f's_add_u32 s42, s41, {nt}'); A(f'v_xor_b32 v42, s42, v40'); A(f'v_lshl_add_u32 v{s.vBr+nt}, v42, 6, v41')
            A(f'v_add_u32 v{s.vBr2+nt}, 0x10000, v{s.vBr+nt}')
        A(f's_mul_i32 s45, s{sW}, {16*OM_PITCH}')
        A(f's_mov_b32 s46, s45'); A(f's_add_u32 s47, s45, {8*OM_PITCH}')
        A(f's_lshl_b32 s50, s{sW}, 11'); A(f's_lshl_b32 s51, s{sW}, 12')
        for j in range(4):
            A(f's_mul_i32 s{52+j}, s{sW}, {16*1280}'); A(f's_add_u32 s{52+j}, s{52+j}, {4*j*1280}')
            A(f's_lshr_b32 s44, s{sW}, 1'); A('s_lshl_b32 s44, s44, 5')
            A(f's_and_b32 s43, s{sW}, 1'); A('s_lshl_b32 s43, s43, 3')
            A('s_add_u32 s44, s44, s43'); A(f's_add_u32 s44, s44, {16*(j&1)+4*(j>>1)}')
            A(f's_mul_i32 s{56+j}, s44, 1280')
    def dma(s,buf,partB):
        out=[]
        for j in range(2):
            out.append([f's_add_u32 s44, s30, s{46+j}', f's_add_u32 m0, s50, {s.LA[buf]+j*1024}', f'buffer_load_dwordx4 v{s.vAd+j}, s[{S_WS}:{S_WS+3}], s44 offen sc1 lds'])
        for j in range(4):
            out.append([f's_add_u32 s44, s31, s{(56 if partB else 52)+j}', f's_add_u32 m0, s51, {s.LW[buf]+j*1024}', f'buffer_load_dwordx4 v{s.vWd}, s[{S_W}:{S_W+3}], s44 offen lds'])
        return out
    def compute(s,buf,fill,first):
        A=s.A
        def rd(ks,st):
            d=s.FA+st*4
            A.lds(f'ds_read_b128 v[{d}:{d+3}], v{s.vAr+ks} offset:{s.LA[buf]-s.LA[0]}',('A',ks))
            for nt in range(2):
                d=s.FB+st*8+nt*4
                for jh in range(2):
                    br=(s.vBr if buf<4 else s.vBr2)+nt; off=(s.LW[buf] if buf<4 else s.LW[buf]-65536)+(16*ks+4*jh)*256
                    A.lds(f'ds_read_b64_tr_b16 v[{d+2*jh}:{d+2*jh+1}], v{br} offset:{off}',('A',ks))
        rd(0,0)
        for ks in range(4):
            st=ks&1
            if ks<3: rd(ks+1,st^1)
            A.wl(('A',ks))
            for nt in range(2):
                acc=s.ACC+nt*16
                c='0' if (first and ks==0) else f'v[{acc}:{acc+15}]'
                A(f'v_mfma_f32_32x32x16_bf16 v[{acc}:{acc+15}], v[{s.FA+st*4}:{s.FA+st*4+3}], v[{s.FB+st*8+nt*4}:{s.FB+st*8+nt*4+3}], {c}')
                if fill:
                    for x in fill.pop(0): A(x)
        while fill:
            for x in fill.pop(0): A(x)

def job_o(A, name='JO', endlabel='L_end'):
    g=GO(A)
    A(f'{name}:')
    A(f'''
    s_mul_i32 s24, s{sJ}, 13108
    s_lshr_b32 s24, s24, 16              ; mb
    s_mul_i32 s25, s24, 5
    s_sub_u32 s25, s{sJ}, s25            ; nb
    ''')
    g.setup()
    A(f'''
    s_mul_i32 s30, s24, {64*OM_PITCH}
    s_add_u32 s30, s30, {OM_OFF}
    s_lshl_b32 s31, s25, 8
    s_mov_b32 s62, s31
    ''')
    srd(A,S_W,P_WO_A,P_WO_A+1,640*640*2)
    NI=74
    def adv(k):
        if k==9:
            return [[f's_add_u32 s30, s30, 128', f's_mov_b32 s31, s62', f's_mov_b32 s{S_W}, s{P_WO}', f's_and_b32 s{S_W+1}, s{P_WO+1}, 0xffff', f's_mov_b32 s{S_W+2}, {4096*640*2}']]
        return [[f's_add_u32 s30, s30, 128', f's_add_u32 s31, s31, {64*1280}']]
    NS=6; D=NS-1
    for k in range(D):
        for grp in g.dma(k,False):
            for x in grp: A(x)
        for x in adv(k)[0]: A(x)
    def it(k,dma_k,first=False):
        rem=min(D-1, NI-1-k)
        A(f's_waitcnt vmcnt({6*rem})')
        A('s_barrier')
        fill=[]
        if dma_k is not None: fill=g.dma(dma_k%NS,dma_k>=10)+adv(dma_k)
        A.lq=[]
        g.compute(k%NS,fill,first)
    for k in range(8): it(k,k+D,first=(k==0))
    A('s_mov_b32 s63, 10')
    A(f'{name}_loop:')
    for k in range(8,14): it(k,k+D)
    A('s_sub_u32 s63, s63, 1'); A('s_cmp_lg_u32 s63, 0'); A(f's_cbranch_scc1 {name}_loop')
    for k in range(68,74): it(k, k+D if k+D<NI else None)
    A('s_nop 15'); A('s_nop 3')
    srd(A,S_A,P_OUT,P_OUT+1,2048*640*2)
    A(f'''
    v_lshrrev_b32 v40, 5, v0
    v_and_b32 v41, 31, v0
    v_mul_u32_u24 v40, {4*1280}, v40
    v_lshl_add_u32 v40, v41, 1, v40
    s_lshl_b32 s26, s24, 6
    s_and_b32 s27, s{sW}, 1
    s_lshl_b32 s27, s27, 5
    s_add_u32 s26, s26, s27              ; token0
    s_mul_i32 s26, s26, 1280
    s_lshl_b32 s27, s25, 8
    s_add_u32 s26, s26, s27
    s_lshr_b32 s27, s{sW}, 1
    s_lshl_b32 s27, s27, 7
    s_add_u32 s26, s26, s27
    ''')
    for nt in range(2):
        for r in range(0,16,2):
            acc=g.ACC+nt*16+r
            A(f'v_cvt_pk_bf16_f32 v44, v{acc}, v{acc+1}')
            row0=8*(r>>2)+(r&3)
            A(f's_add_u32 s27, s26, {row0*1280+nt*64}')
            A(f'buffer_store_short v44, v40, s[{S_A}:{S_A+3}], s27 offen')
            A(f'buffer_store_short_d16_hi v44, v40, s[{S_A}:{S_A+3}], s27 offen offset:1280')
            A('s_nop 0')
    A(f's_branch {endlabel}')


def job_os(A, name='JOS', endlabel='L_end'):
    NS=4
    WB=NS*8192
    vAd=2; vWd=4; vWdP=5; vAr=8; vBr=12; FA=16; FB=24; ACC=32
    A(f'{name}:')
    A(f'''
    s_mul_i32 s24, s{sJ}, 3277
    s_lshr_b32 s24, s24, 16
    s_mul_i32 s25, s24, 20
    s_sub_u32 s25, s{sJ}, s25            ; ct
    s_mul_i32 s26, s{sW}, {WB}
    v_lshrrev_b32 v40, 3, v0
    s_mov_b32 s40, {OM_PITCH}
    v_mul_lo_u32 v40, v40, s40
    v_and_b32 v41, 7, v0
    v_lshrrev_b32 v42, 4, v0
    v_xor_b32 v43, v41, v42
    v_lshl_add_u32 v{vAd}, v43, 4, v40
    v_xor_b32 v43, 4, v43
    v_lshl_add_u32 v{vAd+1}, v43, 4, v40
    v_lshrrev_b32 v40, 2, v0             ; rr = 0..15
    v_and_b32 v41, 3, v0
    v_mul_u32_u24 v42, 1280, v40
    v_lshl_add_u32 v{vWd}, v41, 4, v42   ; natural
    v_bfe_u32 v42, v40, 2, 1
    v_lshlrev_b32 v42, 4, v42
    v_lshrrev_b32 v43, 3, v40
    v_lshl_add_u32 v42, v43, 2, v42
    v_and_b32 v43, 3, v40
    v_add_u32 v42, v42, v43
    v_mul_u32_u24 v42, 1280, v42
    v_lshl_add_u32 v{vWdP}, v41, 4, v42
    v_and_b32 v40, 31, v0
    v_lshlrev_b32 v41, 7, v40
    v_add_u32 v41, s26, v41
    v_lshrrev_b32 v42, 1, v40
    v_and_b32 v42, 7, v42
    v_lshrrev_b32 v43, 5, v0
    v_xor_b32 v42, v42, v43
    ''')
    for ks in range(4):
        A(f'v_xor_b32 v43, {2*ks}, v42'); A(f'v_lshl_add_u32 v{vAr+ks}, v43, 4, v41')
    A(f'''
    v_bfe_u32 v40, v0, 2, 2
    v_lshrrev_b32 v41, 5, v0
    v_lshlrev_b32 v41, 3, v41
    v_add_u32 v41, v41, v40
    v_lshlrev_b32 v41, 6, v41
    v_bfe_u32 v42, v0, 4, 1
    v_lshl_add_u32 v41, v42, 5, v41
    v_and_b32 v42, 3, v0
    v_lshl_add_u32 v41, v42, 3, v41
    v_add_u32 v{vBr}, s26, v41
    s_mul_i32 s30, s24, {32*OM_PITCH}
    s_add_u32 s30, s30, {OM_OFF}         ; A base (k=0)
    s_lshl_b32 s62, s25, 6
    ''')
    for r in range(16): A(f'v_mov_b32 v{ACC+r}, 0')
    def issue(stage, part):
        for j in range(4):
            A(f's_add_u32 s44, s31, {j*8*OM_PITCH}'); A(f's_add_u32 m0, s26, {stage*8192+j*1024}')
            A(f'buffer_load_dwordx4 v{vAd+(j&1)}, s[{S_WS}:{S_WS+3}], s44 offen sc1 lds')
        for j in range(4):
            off=(16*j*1280) if part==0 else (32*(j>>1)+8*(j&1))*1280
            A(f's_add_u32 s44, s33, {off}'); A(f's_add_u32 m0, s26, {stage*8192+4096+j*1024}')
            A(f'buffer_load_dwordx4 v{vWd if part==0 else vWdP}, s[{S_W}:{S_W+3}], s44 offen lds')
    def comp(stage):
        for ks in range(4):
            st=ks&1
            A(f'ds_read_b128 v[{FA+st*4}:{FA+st*4+3}], v{vAr+ks} offset:{stage*8192}')
            for jh in range(2): A(f'ds_read_b64_tr_b16 v[{FB+st*4+2*jh}:{FB+st*4+2*jh+1}], v{vBr} offset:{stage*8192+4096+(16*ks+4*jh)*64}')
            A('s_waitcnt lgkmcnt(0)')
            A(f'v_mfma_f32_32x32x16_bf16 v[{ACC}:{ACC+15}], v[{FA+st*4}:{FA+st*4+3}], v[{FB+st*4}:{FB+st*4+3}], v[{ACC}:{ACC+15}]')
    srd(A,S_W,P_WO_A,P_WO_A+1,640*640*2)
    for k in range(3):
        l=f'{name}_a{k}'
        A(f's_add_u32 s34, s{sW}, {4*k}')
        if k==2: A('s_cmp_ge_u32 s34, 10'); A(f's_cbranch_scc1 {l}')
        A('s_lshl_b32 s35, s34, 7'); A('s_add_u32 s31, s30, s35')
        A(f's_mul_i32 s35, s34, {64*1280}'); A('s_add_u32 s33, s62, s35')
        issue(k,0)
        if k==2: A(f'{l}:')
    A('s_waitcnt vmcnt(0)')
    comp(0); comp(1)
    A(f's_cmp_ge_u32 s{sW}, 2'); A(f's_cbranch_scc1 {name}_a3')
    comp(2)
    A(f'{name}_a3:')
    srd(A,S_W,P_WO,P_WO+1,4096*640*2)
    A(f'''
    s_lshl_b32 s35, s{sW}, 7
    s_add_u32 s31, s30, s35
    s_add_u32 s31, s31, 1280
    s_mul_i32 s35, s{sW}, {64*1280}
    s_add_u32 s33, s62, s35
    ''')
    def adv(): A('s_add_u32 s31, s31, 512'); A(f's_add_u32 s33, s33, {4*64*1280}')
    for m in range(NS-1): issue(m,1); adv()
    nfl=8*(NS-1)
    A('s_mov_b32 s63, 3')
    A(f'{name}_loop:')
    for st in range(NS):
        issue((st+NS-1)%NS,1); adv()
        A(f's_waitcnt vmcnt({nfl})')
        comp(st)
    A('s_sub_u32 s63, s63, 1'); A('s_cmp_lg_u32 s63, 0'); A(f's_cbranch_scc1 {name}_loop')
    issue(3,1); A(f's_waitcnt vmcnt({nfl})'); comp(0)
    A('s_waitcnt vmcnt(16)'); comp(1)
    A('s_waitcnt vmcnt(8)'); comp(2)
    A('s_waitcnt vmcnt(0)'); comp(3)
    A('s_nop 15'); A('s_nop 3')
    A(f'''
    s_barrier
    s_lshl_b32 s34, s{sW}, 12
    v_lshlrev_b32 v70, 2, v0
    v_add_u32 v71, s34, v70
    v_add_u32 v71, 131072, v71
    ''')
    for r in range(16): A(f'ds_write_b32 v71, v{ACC+r} offset:{r*256}')
    A(f'''
    s_waitcnt lgkmcnt(0)
    s_barrier
    s_lshl_b32 s34, s{sW}, 10
    v_add_u32 v71, s34, v70
    v_add_u32 v71, 131072, v71
    ''')
    for ww in range(4):
        for r in range(4): A(f'ds_read_b32 v{48+ww*4+r}, v71 offset:{ww*4096+r*256}')
    A('s_waitcnt lgkmcnt(0)')
    for r in range(4):
        A(f'v_add_f32 v{48+r}, v{48+r}, v{52+r}'); A(f'v_add_f32 v{56+r}, v{56+r}, v{60+r}'); A(f'v_add_f32 v{48+r}, v{48+r}, v{56+r}')
    srd(A,S_A,P_OUT,P_OUT+1,2048*640*2)
    A(f'''
    v_cvt_pk_bf16_f32 v74, v48, v49
    v_cvt_pk_bf16_f32 v75, v50, v51
    v_lshrrev_b32 v70, 5, v0
    v_and_b32 v71, 31, v0
    v_mul_u32_u24 v70, {4*1280}, v70
    v_lshl_add_u32 v70, v71, 1, v70
    s_lshl_b32 s26, s24, 5
    s_lshl_b32 s27, s{sW}, 3
    s_add_u32 s26, s26, s27
    s_mul_i32 s26, s26, 1280
    s_add_u32 s26, s26, s62
    buffer_store_short v74, v70, s[{S_A}:{S_A+3}], s26 offen
    buffer_store_short_d16_hi v74, v70, s[{S_A}:{S_A+3}], s26 offen offset:1280
    buffer_store_short v75, v70, s[{S_A}:{S_A+3}], s26 offen offset:2560
    buffer_store_short_d16_hi v75, v70, s[{S_A}:{S_A+3}], s26 offen offset:3840
    s_branch {endlabel}
    ''')


def job_op(A, name='JOP', endlabel='L_end', depfn=None, T0=15):
    NSW=4
    NSA=8
    WB=32768
    vAd=6; vWd=4; vWdP=5; vAr=8; vBr=12; FA=16; ACC=32
    def breg(part,m): return ('a',16*m) if part==1 else ('v',80+16*m)
    A(f'{name}:')
    A(f'''
    s_mul_i32 s24, s{sJ}, 3277
    s_lshr_b32 s24, s24, 16
    s_mul_i32 s25, s24, 20
    s_sub_u32 s25, s{sJ}, s25            ; ct
    s_mov_b32 s28, s24                   ; keep j
    s_mul_i32 s26, s{sW}, {WB}
    v_lshrrev_b32 v40, 3, v0
    s_mov_b32 s40, {OM_PITCH}
    v_mul_lo_u32 v40, v40, s40
    v_and_b32 v41, 7, v0
    v_lshrrev_b32 v42, 4, v0
    v_xor_b32 v43, v41, v42
    v_lshl_add_u32 v{vAd}, v43, 4, v40
    v_xor_b32 v43, 4, v43
    v_lshl_add_u32 v{vAd+1}, v43, 4, v40
    v_lshrrev_b32 v40, 2, v0
    v_and_b32 v41, 3, v0
    v_mul_u32_u24 v42, 1280, v40
    v_lshl_add_u32 v{vWd}, v41, 4, v42
    v_bfe_u32 v42, v40, 2, 1
    v_lshlrev_b32 v42, 4, v42
    v_lshrrev_b32 v43, 3, v40
    v_lshl_add_u32 v42, v43, 2, v42
    v_and_b32 v43, 3, v40
    v_add_u32 v42, v42, v43
    v_mul_u32_u24 v42, 1280, v42
    v_lshl_add_u32 v{vWdP}, v41, 4, v42
    v_and_b32 v40, 31, v0
    v_lshlrev_b32 v41, 7, v40
    v_add_u32 v41, s26, v41
    v_lshrrev_b32 v42, 1, v40
    v_and_b32 v42, 7, v42
    v_lshrrev_b32 v43, 5, v0
    v_xor_b32 v42, v42, v43
    ''')
    for ks in range(4):
        A(f'v_xor_b32 v43, {2*ks}, v42'); A(f'v_lshl_add_u32 v{vAr+ks}, v43, 4, v41')
    A(f'''
    v_bfe_u32 v40, v0, 2, 2
    v_lshrrev_b32 v41, 5, v0
    v_lshlrev_b32 v41, 3, v41
    v_add_u32 v41, v41, v40
    v_lshlrev_b32 v41, 6, v41
    v_bfe_u32 v42, v0, 4, 1
    v_lshl_add_u32 v41, v42, 5, v41
    v_and_b32 v42, 3, v0
    v_lshl_add_u32 v41, v42, 3, v41
    v_add_u32 v{vBr}, s26, v41
    s_lshl_b32 s62, s25, 6
    ''')
    def wissue(slot,part):
        for j in range(4):
            off=(16*j*1280) if part==0 else (32*(j>>1)+8*(j&1))*1280
            A(f's_add_u32 s44, s33, {off}'); A(f's_add_u32 m0, s26, {slot*4096+j*1024}')
            A(f'buffer_load_dwordx4 v{vWd if part==0 else vWdP}, s[{S_W}:{S_W+3}], s44 offen lds')
    def wcons(slot,part,m):
        kind,b=breg(part,m)
        for ks in range(4):
            for jh in range(2): A(f'ds_read_b64_tr_b16 {kind}[{b+4*ks+2*jh}:{b+4*ks+2*jh+1}], v{vBr} offset:{slot*4096+(16*ks+4*jh)*64}')
        A('s_waitcnt lgkmcnt(0)')
    srd(A,S_W,P_WO_A,P_WO_A+1,640*640*2)
    for m in range(3):
        A(f's_add_u32 s34, s{sW}, {4*m}'); A(f's_mul_i32 s35, s34, {64*1280}'); A('s_add_u32 s33, s62, s35')
        wissue(m,0)
    A('s_waitcnt vmcnt(0)')
    for m in range(3): wcons(m,0,m)
    srd(A,S_W,P_WO,P_WO+1,4096*640*2)
    A(f's_mul_i32 s35, s{sW}, {64*1280}'); A('s_add_u32 s33, s62, s35')
    def wadv(): A(f's_add_u32 s33, s33, {4*64*1280}')
    for m in range(NSW-1): wissue(m,1); wadv()
    for m in range(16):
        if m+NSW-1<16:
            wissue((m+NSW-1)%NSW,1); wadv()
        rem=min(NSW-1,15-m)
        A(f's_waitcnt vmcnt({4*rem})')
        wcons(m%NSW,1,m)
    A(f's_mov_b32 s29, {T0}')
    A(f'{name}_tb:')
    if depfn: depfn(A)
    A(f'''
    s_lshl_b32 s24, s29, 2
    s_add_u32 s24, s24, s28              ; seg
    s_mul_i32 s30, s24, {32*OM_PITCH}
    s_add_u32 s30, s30, {OM_OFF}
    s_mul_i32 s26, s{sW}, {WB}
    ''')
    seq=[(0,m) for m in range(3)]+[(1,m) for m in range(16)]
    def aissue(k):
        part,m=seq[k]
        if part==0:
            A(f's_add_u32 s34, s{sW}, {4*m}'); A('s_min_u32 s34, s34, 9'); A('s_lshl_b32 s35, s34, 7')
        else:
            A(f's_lshl_b32 s35, s{sW}, 7'); A(f's_add_u32 s35, s35, {1280+512*m}')
        A('s_add_u32 s31, s30, s35')
        for j in range(4):
            A(f's_add_u32 s44, s31, {j*8*OM_PITCH}'); A(f's_add_u32 m0, s26, {(k%NSA)*4096+j*1024}')
            A(f'buffer_load_dwordx4 v{vAd+(j&1)}, s[{S_WS}:{S_WS+3}], s44 offen sc1 lds')
    n=len(seq)
    for k in range(NSA-1): aissue(k)
    for k in range(n):
        if k+NSA-1<n: aissue(k+NSA-1)
        rem=min(NSA-1,n-1-k)
        A(f's_waitcnt vmcnt({4*rem})')
        part,m=seq[k]; kind,b=breg(part,m)
        for ks in range(4): A(f'ds_read_b128 v[{FA+4*ks}:{FA+4*ks+3}], v{vAr+ks} offset:{(k%NSA)*4096}')
        for ks in range(4):
            A(f's_waitcnt lgkmcnt({3-ks})')
            c='0' if (k==0 and ks==0) else f'v[{ACC}:{ACC+15}]'
            A(f'v_mfma_f32_32x32x16_bf16 v[{ACC}:{ACC+15}], v[{FA+4*ks}:{FA+4*ks+3}], {kind}[{b+4*ks}:{b+4*ks+3}], {c}')
    A('s_nop 15'); A('s_nop 3')
    A(f'''
    s_lshl_b32 s34, s{sW}, 12
    v_lshlrev_b32 v70, 2, v0
    v_add_u32 v71, s34, v70
    v_add_u32 v71, 131072, v71
    ''')
    for r in range(16): A(f'ds_write_b32 v71, v{ACC+r} offset:{r*256}')
    A(f'''
    s_waitcnt lgkmcnt(0)
    s_barrier
    s_lshl_b32 s34, s{sW}, 10
    v_add_u32 v71, s34, v70
    v_add_u32 v71, 131072, v71
    ''')
    for ww in range(4):
        for r in range(4): A(f'ds_read_b32 v{48+ww*4+r}, v71 offset:{ww*4096+r*256}')
    A('s_waitcnt lgkmcnt(0)')
    for r in range(4):
        A(f'v_add_f32 v{48+r}, v{48+r}, v{52+r}'); A(f'v_add_f32 v{56+r}, v{56+r}, v{60+r}'); A(f'v_add_f32 v{48+r}, v{48+r}, v{56+r}')
    srd(A,S_A,P_OUT,P_OUT+1,2048*640*2)
    A(f'''
    v_cvt_pk_bf16_f32 v74, v48, v49
    v_cvt_pk_bf16_f32 v75, v50, v51
    v_lshrrev_b32 v70, 5, v0
    v_and_b32 v71, 31, v0
    v_mul_u32_u24 v70, {4*1280}, v70
    v_lshl_add_u32 v70, v71, 1, v70
    s_lshl_b32 s26, s24, 5
    s_lshl_b32 s27, s{sW}, 3
    s_add_u32 s26, s26, s27
    s_mul_i32 s26, s26, 1280
    s_add_u32 s26, s26, s62
    buffer_store_short v74, v70, s[{S_A}:{S_A+3}], s26 offen
    buffer_store_short_d16_hi v74, v70, s[{S_A}:{S_A+3}], s26 offen offset:1280
    buffer_store_short v75, v70, s[{S_A}:{S_A+3}], s26 offen offset:2560
    buffer_store_short_d16_hi v75, v70, s[{S_A}:{S_A+3}], s26 offen offset:3840
    s_add_u32 s29, s29, 1
    s_cmp_lt_u32 s29, 16
    s_cbranch_scc0 {endlabel}
    s_waitcnt lgkmcnt(0)
    s_barrier
    s_branch {name}_tb
    ''')
```

```python
import sys,os; sys.path.insert(0,'gen')
from asmlib import *
from layout import *
import gemm, jobs_a, jobs_c
import importlib
chain7=importlib.import_module(os.environ.get("CHAIN","chain9"))
from gemm import S_WS, sW, sJ
REF='gated_mix__linear_kernel_hedgehog__memory_aug_recurrent_mem_tr__prompt.s.ref'
HDR=open(REF).read().split('; Override launch geometry')[0] if os.path.exists(REF) else ''
S_D=64
sSig=68
sSeen=69
sFail=70
WS=f's[{S_WS}:{S_WS+3}]'; DB=f's[{S_D}:{S_D+3}]'

def wait_flag(A, off_reg, target, lab, sleep=4):
    A(f'''
    s_cmp_lg_u32 s{sW}, 0
    s_cbranch_scc1 {lab}_b
    s_mov_b32 s71, 0
    v_mov_b32 v2, 0
    {lab}_p:
    buffer_load_dword v1, v2, {WS}, s{off_reg} offen sc1
    s_waitcnt vmcnt(0)
    v_readfirstlane_b32 s96, v1
    s_add_u32 s71, s71, 1
    s_cmp_ge_u32 s71, 2000000
    s_cbranch_scc1 {lab}_b
    s_cmp_ge_u32 s96, {target}
    s_cbranch_scc1 {lab}_b
    s_sleep {sleep}
    s_branch {lab}_p
    {lab}_b:
    s_barrier
    ''')
def ensure_flagrdy(A, lab):
    A(f'''
    s_cmp_lg_u32 s{sSeen}, 0
    s_cbranch_scc1 {lab}_d
    s_mov_b32 s71, 0
    v_mov_b32 v2, {D_FLAGRDY}
    {lab}_p:
    buffer_load_dword v1, v2, {DB}, 0 offen sc1
    s_waitcnt vmcnt(0)
    v_readfirstlane_b32 s96, v1
    s_add_u32 s71, s71, 1
    s_cmp_ge_u32 s71, 2000000
    s_cbranch_scc1 {lab}_s
    s_cmp_eq_u32 s96, 0
    s_cbranch_scc1 {lab}_p
    {lab}_s:
    s_mov_b32 s{sSeen}, 1
    {lab}_d:
    ''')

PROF_OFF=0x6900000
PROF=[False]
def worker(A, jobs):
    A('L_worker:')
    gemm.common_prologue(A, lane_done=True)
    A(f'''
    s_mov_b32 s{S_D}, s6
    s_and_b32 s{S_D+1}, s7, 0xffff
    s_mov_b32 s{S_D+2}, 256
    s_mov_b32 s{S_D+3}, 0x20000
    s_mov_b32 s{sSeen}, 0
    PFBLOCK
    L_next:
    s_cmp_lg_u32 s{sW}, 0
    s_cbranch_scc1 L_q_b
    v_mov_b32 v1, 1
    v_mov_b32 v2, {D_QUEUE}
    s_mov_b64 exec, 1
    buffer_atomic_add v1, v2, {DB}, 0 offen sc0
    s_waitcnt vmcnt(0)
    v_mov_b32 v2, 163836
    ds_write_b32 v2, v1
    s_waitcnt lgkmcnt(0)
    s_mov_b64 exec, -1
    L_q_b:
    s_barrier
    v_mov_b32 v2, 163836
    ds_read_b32 v1, v2
    s_waitcnt lgkmcnt(0)
    v_readfirstlane_b32 s97, v1
    s_barrier
    ''')
    if PROF[0]:
        A('s_mov_b32 s99, s97'); A('s_memrealtime s[100:101]'); A('s_waitcnt lgkmcnt(0)'); A('s_mov_b32 s3, s100')
    for (nm,cnt,setup,lab) in jobs:
        A(f's_cmp_lt_u32 s97, {cnt}')
        A(f's_cbranch_scc1 L_set_{nm}')
        A(f's_sub_u32 s97, s97, {cnt}')
    A('s_branch L_end')
    for (nm,cnt,setup,lab) in jobs:
        A(f'L_set_{nm}:')
        setup(A)
        A(f's_branch {lab}')
    A(f'''
    L_jobdone:
    s_waitcnt vmcnt(0) lgkmcnt(0)
    s_barrier
    s_cmp_lg_u32 s{sW}, 0
    s_cbranch_scc1 L_next
    ''')
    if PROF[0]:
        A(f'''s_memrealtime s[100:101]
        s_waitcnt lgkmcnt(0)
        v_mov_b32 v4, s3
        v_mov_b32 v5, s100
        s_lshl_b32 s96, s99, 3
        s_add_u32 s96, s96, {PROF_OFF}
        v_mov_b32 v2, 0
        s_mov_b64 exec, 1
        buffer_store_dwordx2 v[4:5], v2, {WS}, s96 offen
        s_mov_b64 exec, -1''')
    ensure_flagrdy(A,'L_fr')
    A(f'''
    v_mov_b32 v1, 1
    v_mov_b32 v2, 0
    s_mov_b64 exec, 1
    buffer_atomic_add v1, v2, {WS}, s{sSig} offen
    s_mov_b64 exec, -1
    s_branch L_next
    ''')

def fl(k): return FLG_OFF+128*k
def dep(A, k, target, lab, sleep=4):
    l2=lab+'_e'
    A(f's_cmp_lg_u32 s{sW}, 0'); A(f's_cbranch_scc1 {l2}')
    ensure_flagrdy(A,lab+'_fr')
    A(f'{l2}:')
    A(f's_mov_b32 s98, {fl(k)}')
    wait_flag(A,98,target,lab,sleep)

def gen(full=True, nsmall=2, prof=False, pf=True, pre15=True, op_at=10, opT0=12, early14=False, cpf=0, **kw):
    PROF[0]=prof
    A=Sched()
    def s_prep(A):
        A(f's_mov_b32 s{sJ}, s97'); A(f's_mov_b32 s{sSig}, {fl(F_PREP)}')
    def s_kv(A):
        A(f'''s_lshr_b32 s24, s97, 5
        s_bfe_u32 s25, s97, 0x10004
        s_and_b32 s26, s97, 15
        s_lshl_b32 s{sJ}, s25, 8
        s_lshl_b32 s27, s24, 4
        s_add_u32 s{sJ}, s{sJ}, s27
        s_add_u32 s{sJ}, s{sJ}, s26
        s_lshl_b32 s27, s24, 7
        s_add_u32 s{sSig}, s27, {fl(F_KV)}''')
    def s_q(A):
        A(f'''s_add_u32 s{sJ}, s97, 512
        s_lshr_b32 s27, s97, 4
        s_lshl_b32 s27, s27, 7
        s_add_u32 s{sSig}, s27, {fl(F_Q)}''')
    def s_a1(A):
        dep(A,F_PREP,64,'L_da1')
        A(f's_mov_b32 s{sJ}, s97'); A(f's_mov_b32 s{sSig}, {fl(F_A1)}')
    def s_kvr(A):
        dep(A,F_A1,128,'L_dkvr')
        A(f's_mov_b32 s{sJ}, s97'); A(f's_mov_b32 s{sSig}, {fl(F_KVR)}')
    def s_a2(A):
        dep(A,F_KVR,32,'L_da2')
        A(f'''s_mov_b32 s{sJ}, s97
        s_lshr_b32 s27, s97, 3
        s_lshl_b32 s27, s27, 7
        s_add_u32 s{sSig}, s27, {fl(F_A2)}''')
    def s_c(tb):
        def f(A):
            dep(A,F_Q+tb,16,f'L_dc{tb}q'); dep(A,F_KV+tb,32,f'L_dc{tb}k')
            A(f's_add_u32 s{sJ}, s97, {32*tb}'); A(f's_mov_b32 s{sSig}, {fl(F_C+tb)}')
        return f
    def s_o(tb):
        def f(A):
            dep(A,F_C+tb,32,f'L_do{tb}c'); dep(A,F_A2+tb,8,f'L_do{tb}a')
            A(f's_add_u32 s{sJ}, s97, {10*tb}'); A(f's_mov_b32 s{sSig}, {fl(F_N)}')
        return f
    def s_os(tb):
        def f(A):
            dep(A,F_C+tb,32,f'L_ds{tb}c'); dep(A,F_A2+tb,8,f'L_ds{tb}a')
            A(f's_add_u32 s{sJ}, s97, {80*tb}'); A(f's_mov_b32 s{sSig}, {fl(F_N)}')
        return f
    jobs=[('prep',64,s_prep,'JPREP'),('kv',512,s_kv,'JP'),('a1',128,s_a1,'JA1'),('q',256,s_q,'JP'),('kvr',32,s_kvr,'JKVR'),('a2',128,s_a2,'JA2')]
    if full:
        def s_op(A):
            A(f's_mov_b32 s{sJ}, s97'); A(f's_mov_b32 s{sSig}, {fl(F_N)}')
        def oj(t): return (f'o{t}',10,s_o(t),'JO')
        for tb in range(16):
            jobs.append((f'c{tb}',32,s_c(tb),'JC'))
            if tb==op_at and pre15: jobs.append(('o15',80,s_op,'JOP'))
            if tb>=1 and tb-1<opT0: jobs.append(oj(tb-1))
        if not pre15: jobs.append(('o15',80,s_os(15),'JOS'))
        elif op_at>15: jobs.append(('o15',80,s_op,'JOP'))
        import json; json.dump([(j[0],j[1]) for j in jobs],open('joblist.json','w'))
        kw=dict(kw,prog=True,kvflag='sc1')
    A.raw(kernel_header('main_kernel'))
    if cpf:
        A(f'''
        s_getpc_b64 s[36:37]
        L_pc0:
        s_sub_u32 s36, s36, L_pc0-main_kernel
        s_subb_u32 s37, s37, 0
        v_lshlrev_b32 v1, 7, v0
        v_lshrrev_b32 v2, 6, v0
        s_nop 0
        v_readfirstlane_b32 s38, v2
        s_lshl_b32 s38, s38, 8
        s_add_u32 m0, s38, 162560
        s_nop 0
        ''')
        for r in range(cpf):
            A('v_cmp_gt_u32 vcc, L_codeend-main_kernel, v1')
            A('s_and_saveexec_b64 s[40:41], vcc')
            A(f's_cbranch_execz L_cpf_done')
            A('global_load_lds_dword v1, s[36:37]')
            A('s_mov_b64 exec, s[40:41]')
            A('v_add_u32 v1, 0x8000, v1')
        A('L_cpf_done:')
        A('s_mov_b64 exec, -1')
    chain7.gen_body(A, other='L_worker', merged=True, **kw)
    worker(A,jobs)
    for fn,lab in ((gemm.job_proj,'JP'),(jobs_a.job_prep,'JPREP'),(jobs_a.job_a1,'JA1'),(jobs_a.job_kvred,'JKVR'),(jobs_a.job_a2,'JA2')):
        A.lq=[]; A.vq=[]
        fn(A,name=lab,endlabel='L_jobdone')
    if full:
        A.lq=[]; A.vq=[]; jobs_c.job_c(A,name='JC',endlabel='L_jobdone',merged=True)
        A.lq=[]; A.vq=[]; jobs_c.job_o(A,name='JO',endlabel='L_jobdone')
        def dep15(A):
            for k,target,lab,sl in ((F_A2,8,'L_dpa',4),(F_C,32,'L_dpc',1)):
                l2=lab+'_e'
                A(f's_cmp_lg_u32 s{sW}, 0'); A(f's_cbranch_scc1 {l2}')
                ensure_flagrdy(A,lab+'_fr')
                A(f'{l2}:')
                A('s_lshl_b32 s98, s29, 7'); A(f's_add_u32 s98, s98, {fl(k)}')
                wait_flag(A,98,target,lab,sl)
        if pre15:
            A.lq=[]; A.vq=[]; jobs_c.job_op(A,name='JOP',endlabel='L_jobdone',depfn=dep15,T0=opT0)
    A('L_codeend:')
    A('s_endpgm')
    A.raw(kernel_desc('main_kernel'))
    main=A.text()
    pfc=''
    if pf:
        B=Sched()
        B(f'''
        s_cmp_eq_u32 s{sW}, 0
        s_cselect_b32 s24, s82, s84
        s_cselect_b32 s25, s83, s85
        s_cmp_eq_u32 s{sW}, 2
        s_cselect_b32 s24, s86, s24
        s_cselect_b32 s25, s87, s25
        s_cmp_eq_u32 s{sW}, 3
        s_cselect_b32 s24, s88, s24
        s_cselect_b32 s25, s89, s25
        s_mov_b32 s12, s24
        s_and_b32 s13, s25, 0xffff
        s_mov_b32 s14, 5242880
        s_mov_b32 s15, 0x20000
        s_mul_i32 s26, s2, 20480
        v_lshlrev_b32 v1, 7, v0
        s_lshl_b32 s27, s{sW}, 8
        s_add_u32 m0, s27, 162560
        s_nop 0
        buffer_load_dword v1, s[12:15], s26 offen lds
        s_add_u32 s26, s26, 8192
        buffer_load_dword v1, s[12:15], s26 offen lds
        s_add_u32 s26, s26, 8192
        s_mov_b32 exec_hi, 0
        buffer_load_dword v1, s[12:15], s26 offen lds
        s_mov_b64 exec, -1
        ''')
        pfc=B.text()
    main=main.replace('  PFBLOCK\n',pfc)
    if full:
        return HDR+'; @launch kernel=main_kernel grid=(256,1,1) block=(256,1,1) lds=163840\n.amdgcn_target "amdgcn-amd-amdhsa--gfx950"\n.text\n'+main
    import build_v1
    t2,n2=build_v1.simple_kernel('post_kernel',[(512,jobs_c.job_c,'JC')])
    t3,n3=build_v1.simple_kernel('out_kernel',[(160,jobs_c.job_o,'JO')])
    out=HDR
    out+='; @launch kernel=main_kernel grid=(256,1,1) block=(256,1,1) lds=163840\n'
    out+=f'; @launch kernel=post_kernel grid=({n2},1,1) block=(256,1,1) lds=0\n'
    out+=f'; @launch kernel=out_kernel grid=({n3},1,1) block=(256,1,1) lds=73728\n'
    out+='.amdgcn_target "amdgcn-amd-amdhsa--gfx950"\n.text\n'+main+t2+t3
    return out
if __name__=='__main__':
    kw=eval(sys.argv[2]) if len(sys.argv)>2 else {}
    open(sys.argv[1] if len(sys.argv)>1 else 'v2.s','w').write(gen(**kw))
```
